```python
import torch

def _softmax(x, axis=-1):
    return torch.softmax(x, dim=axis)
def _gelu(x):
    return torch.nn.functional.gelu(x, approximate="tanh")
def _silu(x):
    return torch.nn.functional.silu(x)
def _sigmoid(x):
    return torch.sigmoid(x)
def _layernorm(x, axis=-1, eps=1e-5):
    m = x.mean(dim=axis, keepdim=True)
    v = x.var(dim=axis, keepdim=True, unbiased=False)
    return (x - m) / torch.sqrt(v + eps)
def _scatter_add(tgt, idx, src, axis=0):
    return tgt.clone().index_add_(axis, idx, src)
def _segment_sum(src, seg, n):
    out = torch.zeros((n,) + src.shape[1:], dtype=src.dtype)
    return out.index_add_(0, seg, src)
def _pad(x, pw):
    flat = tuple(v for pair in reversed(pw) for v in pair)
    return torch.nn.functional.pad(x, flat)

kernel_name = 'parallel_sum__sliding_local_dilated__mixer_s_mlp__prompt'

def setup_inputs():

    _w = (lambda a: (lambda t: t.to(torch.bfloat16) if t.is_floating_point() else t)(torch.as_tensor(a)))
    def _A_setup():
        B, S, D = 1, 2048, 576
        return {
            "x": _w((lambda *s: torch.randn(*s, dtype=torch.bfloat16) * 0.05)(B, S, D)),
            "wqkv": _w((lambda *s: torch.randn(*s, dtype=torch.bfloat16) * 0.1)(D, 3 * D)),
            "wo": _w((lambda *s: torch.randn(*s, dtype=torch.bfloat16) * 0.05)(D, D)),
        }
    _A_in = _A_setup()

    def _B_setup():
        B, S, D, F = 1, 2048, 576, 4608
        return {
            "x":  _w((lambda *s: torch.randn(*s, dtype=torch.bfloat16) * 0.05)(B, S, D)),
            "w1": _w((lambda *s: torch.randn(*s, dtype=torch.bfloat16) * 3.2)(D, D) * (D ** -0.5)),
            "w2": _w((lambda *s: torch.randn(*s, dtype=torch.bfloat16) * 3.2)(D, D) * (D ** -0.5)),
            "w3": _w((lambda *s: torch.randn(*s, dtype=torch.bfloat16) * 3.2)(D, F) * (D ** -0.5)),
            "w4": _w((lambda *s: torch.randn(*s, dtype=torch.bfloat16) * 3.2)(F, D) * (F ** -0.5)),
        }
    _B_in = _B_setup()

    return {
        "A_x": _A_in["x"],
        "A_wqkv": _A_in["wqkv"],
        "A_wo": _A_in["wo"],
        "B_x": _B_in["x"],
        "B_w1": _B_in["w1"],
        "B_w2": _B_in["w2"],
        "B_w3": _B_in["w3"],
        "B_w4": _B_in["w4"],
    }

def reference(A_x, A_wqkv, A_wo, B_x, B_w1, B_w2, B_w3, B_w4):
    def _A_ref(x, wqkv, wo):
        B, S, D = x.shape
        H = 32; Dh = D // H
        W, dil = 8, 2
        qkv = (lambda x, *d: x.permute(*d))((x @ wqkv).reshape(B, S, 3, H, Dh), 2, 0, 3, 1, 4)
        q, k, v = qkv[0], qkv[1], qkv[2]
        scale = Dh ** -0.5
        pos = torch.arange(S)
        off = torch.arange(W) * dil
        idx = pos[:, None] - off[None, :]
        mask = idx >= 0
        idx_c = torch.where(mask, idx, 0).reshape(-1)
        kg = k[:, :, idx_c, :].reshape(B, H, S, W, Dh)
        vg = v[:, :, idx_c, :].reshape(B, H, S, W, Dh)
        logits = torch.einsum("bhsd,bhswd->bhsw", q, kg) * scale
        logits = torch.where(mask[None, None, :, :], logits, -1e9)
        attn = _softmax(logits, axis=-1)
        o = torch.einsum("bhsw,bhswd->bhsd", attn, vg)
        return (lambda x, *d: x.permute(*d))(o, 0, 2, 1, 3).reshape(B, S, D) @ wo

    def _B_ref(x, w1, w2, w3, w4):
        B, S, D = x.shape
        h = _gelu(_layernorm(x, axis=-1) @ w1)
        c = D // 4
        g0 = _pad(h[:, :, 0*c:1*c], ((0, 0), (1, 0), (0, 0)))[:, :S, :]
        g1 = _pad(h[:, :, 1*c:2*c], ((0, 0), (0, 1), (0, 0)))[:, 1:, :]
        g2 = _pad(h[:, :, 2*c:3*c], ((0, 0), (2, 0), (0, 0)))[:, :S, :]
        g3 = _pad(h[:, :, 3*c:   ], ((0, 0), (0, 2), (0, 0)))[:, 2:, :]
        hs = torch.concatenate([g0, g1, g2, g3], axis=-1) @ w2
        x1 = x + hs
        h2 = _gelu(_layernorm(x1, axis=-1) @ w3) @ w4
        return x1 + h2

    x = A_x
    xn = _layernorm(x, axis=-1)
    return x + _A_ref(xn, A_wqkv, A_wo) + _B_ref(xn, B_w1, B_w2, B_w3, B_w4)
```

```python
import re

KN = "parallel_sum__sliding_local_dilated__mixer_s_mlp__prompt_kernel"
TRANS = ("v_exp_f32", "v_log_f32", "v_rcp_f32", "v_rsq_f32", "v_sqrt_f32", "v_sin_f32", "v_cos_f32")
RMW = ("v_fmac_f32", "v_dot2c_f32_bf16", "v_pk_fmac_f16", "v_writelane_b32")

def R(p, i, n=1):
    return "%s%d" % (p, i) if n == 1 else "%s[%d:%d]" % (p, i, i + n - 1)
def v(i, n=1): return R("v", i, n)
def s(i, n=1): return R("s", i, n)

_re_reg = re.compile(r"^(-?)(?:abs\()?\|?([vsa])(?:(\d+)|\[(\d+):(\d+)\])\|?\)?$")
def regs_of(op):
    op = op.strip()
    if op in ("vcc", "vcc_lo", "vcc_hi"): return ["vcc"]
    if op in ("exec", "exec_lo", "exec_hi"): return ["exec"]
    if op == "m0": return ["m0"]
    m = _re_reg.match(op)
    if not m: return []
    p = m.group(2)
    if m.group(3) is not None: return [p + m.group(3)]
    return [p + str(i) for i in range(int(m.group(4)), int(m.group(5)) + 1)]

class Ins:
    def __init__(self, text):
        self.text = text
        t = text.split(";")[0].strip()
        parts = t.split(None, 1)
        self.op = parts[0]
        rest = parts[1] if len(parts) > 1 else ""
        ops = [x.strip() for x in rest.split(",")] if rest else []
        self.mods = ""
        if ops:
            last = ops[-1].split(None, 1)
            if len(last) > 1:
                ops[-1] = last[0]; self.mods = last[1]
        clean = []
        for i, o in enumerate(ops):
            if " " in o:
                a, b = o.split(None, 1)
                clean.append(a); self.mods = b + "," + ",".join(ops[i+1:]) + " " + self.mods
                break
            clean.append(o)
        self.ops = clean
        op = self.op
        self.r = []; self.w = []
        self.kind = "other"
        allr = lambda xs: [x for o in xs for x in regs_of(o)]
        if op.startswith("v_mfma"):
            self.kind = "mfma"; self.passes = 8 if "32x32" in op else 4
            self.w = regs_of(clean[0]); self.ab = allr(clean[1:3]); self.c = regs_of(clean[3]); self.r = self.ab + self.c
        elif op.startswith("v_cmp"):
            self.kind = "valu"; self.w = regs_of(clean[0]); self.r = allr(clean[1:])
        elif op.startswith("v_permlane") and "swap" in op:
            self.kind = "valu"; self.w = allr(clean[:2]); self.r = allr(clean[:2])
        elif op.startswith("v_add_co") or op.startswith("v_addc_co") or op.startswith("v_sub_co") or op.startswith("v_mad_u64"):
            self.kind = "valu"; self.w = allr(clean[:2]); self.r = allr(clean[2:])
        elif op.startswith("v_"):
            self.kind = "valu"
            if op != "v_nop":
                self.w = regs_of(clean[0]); self.r = allr(clean[1:])
                base = op.replace("_e32", "").replace("_e64", "").replace("_dpp", "")
                if base in RMW or "dpp" in op or "row_" in self.mods or "quad_perm" in self.mods: self.r += self.w
        elif op.startswith("ds_read") or op.startswith("ds_bpermute") or op.startswith("ds_swizzle"):
            self.kind = "ds"; self.w = regs_of(clean[0]); self.r = allr(clean[1:])
        elif op.startswith("ds_"):
            self.kind = "ds"; self.r = allr(clean)
        elif op.startswith("buffer_load") or op.startswith("global_load"):
            self.kind = "vmem"
            self.lds = (" lds" in " " + self.mods.replace(",", " ")) or "_lds_" in op
            if self.lds: self.r = allr(clean) + ["m0"]
            else: self.w = regs_of(clean[0]); self.r = allr(clean[1:])
        elif op.startswith("buffer_atomic") or op.startswith("global_atomic"):
            self.kind = "vmem"; self.r = allr(clean)
            if "sc0" in self.mods: self.w = regs_of(clean[0])
        elif op.startswith("buffer_") or op.startswith("global_"):
            self.kind = "vmem"; self.r = allr(clean)
            if op.endswith("x4") or op.endswith("x3"):
                self.wide = regs_of(clean[0] if op.startswith("buffer") else clean[1])
        elif op.startswith("s_load") or op.startswith("s_memtime") or op.startswith("s_memrealtime"):
            self.kind = "smem"; self.w = regs_of(clean[0]); self.r = allr(clean[1:])
        elif op.startswith("s_cmp") or op.startswith("s_bitcmp"):
            self.kind = "salu"; self.r = allr(clean)
        elif op in ("s_waitcnt", "s_nop", "s_barrier", "s_endpgm", "s_setprio", "s_sleep", "s_branch") or op.startswith("s_cbranch"):
            self.kind = "ctl"
        elif op.startswith("s_"):
            self.kind = "salu"; self.w = regs_of(clean[0]); self.r = allr(clean[1:])
            if "saveexec" in op: self.w += ["exec"]
            if op in ("s_addk_i32", "s_mulk_i32"): self.r += self.w
        self.dpp = self.kind == "valu" and ("dpp" in op or "row_" in self.mods or "quad_perm" in self.mods)
        self.trans = op.replace("_e32", "").replace("_e64", "") in TRANS
        self.dot = op.startswith("v_dot")

class Asm:
    def __init__(self):
        self.out = []
        self.slot = 0
        self.lastw = {}
        self.mfma_c = {}
        self.widest = {}
        self.vm = []
        self.lg = []
        self.nid = 0
        self.nops = 0
        self.stats = {}
    def raw(self, text): self.out.append(text)
    def comment(self, t): self.out.append("; " + t)
    def label(self, name, pad=True):
        self.out.append(name + ":")
    def _put(self, text, slots=1):
        self.out.append("  " + text); self.slot += slots
    def nop(self, n):
        while n > 0:
            k = min(n, 16); self._put("s_nop %d" % (k - 1), k); n -= k; self.nops += 1
    def wait(self, vm=None, lg=None):
        p = []
        if vm is not None and len(self.vm) > vm:
            assert vm <= 63
            p.append("vmcnt(%d)" % vm); self.vm = self.vm[len(self.vm) - vm:] if vm else []
        if lg is not None and len(self.lg) > lg:
            if any(x[2] for x in self.lg): lg = 0
            lg = min(lg, 15)
            p.append("lgkmcnt(%d)" % lg); self.lg = self.lg[len(self.lg) - lg:] if lg else []
        if p: self._put("s_waitcnt " + " ".join(p))
    def force_wait(self, vm=None, lg=None):
        p = []
        if vm is not None: p.append("vmcnt(%d)" % vm); self.vm = self.vm[max(0, len(self.vm) - vm):] if vm else []
        if lg is not None: p.append("lgkmcnt(%d)" % lg); self.lg = self.lg[max(0, len(self.lg) - lg):] if lg else []
        self._put("s_waitcnt " + " ".join(p))
    def wait_id(self, ident):
        for q, name in ((self.vm, "vm"), (self.lg, "lg")):
            for i, x in enumerate(q):
                if x[0] == ident:
                    self.wait(**{name: len(q) - 1 - i}); return
    def __call__(self, text):
        last = None
        for t in text.split("\n"):
            t = t.strip()
            if not t: continue
            if t.startswith(";"): self.raw(t); continue
            if t.endswith(":"): self.label(t[:-1]); continue
            last = self.ins(t)
        return last
    def ins(self, text):
        I = Ins(text)
        self.stats[I.kind] = self.stats.get(I.kind, 0) + 1
        if I.op == "s_nop":
            self.nop(int(I.ops[0]) + 1); return None
        assert I.op != "s_waitcnt", "use wait()/force_wait()"
        touched = set(I.r) | set(I.w)
        nv = nl = None
        for i, x in enumerate(self.vm):
            if touched & x[1]: nv = len(self.vm) - 1 - i
        for i, x in enumerate(self.lg):
            if touched & x[1]:
                if I.kind == "ds" and not x[2] and not (set(I.r) & x[1]): continue
                nl = len(self.lg) - 1 - i
        self.wait(nv, nl)
        if I.kind == "vmem" and len(self.vm) >= 63: self.wait(vm=62)
        need = 0
        def req(reg_slot, n):
            nonlocal need
            need = max(need, n - (self.slot - reg_slot - 1))
        for r in set(I.r):
            if r not in self.lastw: continue
            sl, P = self.lastw[r]
            if P.kind == "valu":
                isv = r[0] in "va" and r != "vcc"
                if isv:
                    if I.kind == "mfma": req(sl, 3 if P.dot else 2)
                    if I.op.startswith("v_readfirstlane") or I.op.startswith("v_readlane"): req(sl, 1)
                    if I.dpp or I.op.startswith("v_permlane"): req(sl, 2)
                    if P.trans: req(sl, 1)
                    if "op_sel" in P.mods and not P.op.startswith("v_pk") or "sdwa" in P.op: req(sl, 1)
                    if P.dot and not (I.op == P.op and r in I.w and I.r.count(r) == 1): req(sl, 3)
                else:
                    if I.kind == "valu": req(sl, 4 if I.op.startswith("v_readlane") or I.op.startswith("v_writelane") else 2)
                    if I.kind == "vmem": req(sl, 5)
                    if I.kind in ("salu", "smem"): req(sl, 2)
            elif P.kind == "mfma":
                big = P.passes == 8
                if I.kind == "mfma":
                    if r in I.ab: req(sl, 12 if big else 8)
                    elif not (I.c == P.w and I.passes == P.passes): req(sl, 10 if big else 6)
                else: req(sl, 12 if big else 8)
            elif P.kind == "salu" and r == "m0" and I.kind == "vmem": req(sl, 1)
        for r in set(I.w):
            if r in self.lastw:
                sl, P = self.lastw[r]
                if P.kind == "mfma" and I.kind != "mfma": req(sl, 12 if P.passes == 8 else 8)
                if P.kind == "mfma" and I.kind == "mfma" and not (I.w == P.w and I.passes == P.passes): req(sl, 12 if P.passes == 8 else 8)
                if P.kind == "valu" and P.dot and I.op != P.op: req(sl, 3)
            if r in self.mfma_c and I.kind != "mfma":
                sl, p = self.mfma_c[r]; req(sl, 7 if p == 8 else 3)
            if r in self.widest: req(self.widest[r], 2)
        if I.op.startswith("s_cbranch_vcc") and "vcc" in self.lastw and self.lastw["vcc"][1].kind == "valu": req(self.lastw["vcc"][0], 5)
        if need > 0: self.nop(need)
        sl = self.slot
        self._put(text)
        for r in I.w: self.lastw[r] = (sl, I)
        if I.kind == "mfma":
            for r in I.c: self.mfma_c[r] = (sl, I.passes)
        for r in getattr(I, "wide", []): self.widest[r] = sl
        self.nid += 1
        if I.kind == "vmem": self.vm.append((self.nid, set(I.w)))
        if I.kind == "ds": self.lg.append((self.nid, set(I.w), False))
        if I.kind == "smem": self.lg.append((self.nid, set(I.w), True)); self.lg.append((self.nid, set(I.w), True))
        return self.nid
    def snap(self):
        return (self.slot, dict(self.lastw), dict(self.mfma_c), dict(self.widest), list(self.vm), list(self.lg))
    def restore(self, st):
        self.slot, self.lastw, self.mfma_c, self.widest, self.vm, self.lg = st[0], dict(st[1]), dict(st[2]), dict(st[3]), list(st[4]), list(st[5])
    def text(self): return "\n".join(self.out)

def header(launch_lines, extra=""):
    return "\n".join(launch_lines) + "\n" + extra + '.amdgcn_target "amdgcn-amd-amdhsa--gfx950"\n.text\n'
def kstart(name):
    return ".globl %s\n.p2align 8\n.type %s,@function\n%s:\n" % (name, name, name)
def kdesc(name, vgpr=256, sgpr=102, acc=None):
    return '''.p2align 6
.amdhsa_kernel %s
  .amdhsa_next_free_vgpr %d
  .amdhsa_next_free_sgpr %d
  .amdhsa_accum_offset %d
  .amdhsa_group_segment_fixed_size 0
  .amdhsa_kernarg_size 88
  .amdhsa_user_sgpr_count 2
  .amdhsa_user_sgpr_kernarg_segment_ptr 1
  .amdhsa_system_sgpr_workgroup_id_x 1
.end_amdhsa_kernel
''' % (name, vgpr, sgpr, acc or (vgpr + 3) // 4 * 4)
```

```python
import sys, struct, math
sys.path.insert(0, "gen")
from asmlib import *

def fl(x): return "0x%08x" % struct.unpack("<I", struct.pack("<f", x))[0]
C1 = 2.0 * math.sqrt(2.0 / math.pi) * math.log2(math.e)
C2 = C1 * 0.044715
AS = C2 ** (1.0 / 3.0)
KG = C1 / AS
EPS = 1e-5
SCL = 18 ** -0.5 * math.log2(math.e)

FL = 0
STAMP = 0x20000
PKE = 0x100000; PKE_F = 5 * 73728 + 3 * 18432
PK3 = PKE + 8 * PKE_F; PK3_F = 663552
PK4 = PK3 + 8 * PK3_F; PK4_F = 9 * 4 * 21 * 1024
H1 = PK4 + 8 * PK4_F
X1 = H1 + 32 * 73728
KVH = X1 + 32 * 73728
PART = KVH + 256 * 8192
WS_END = PART + 32 * 9 * 65536
OOB = 0x80000000
LA = 0; LSH0 = 73728; LSH1 = 92160; LO = LSH1; LK = 110592; LQ = 122112; LV = 131328; LR2 = 154368; LDS_END = 154624
MH, MK, MV, MQ, MX = 0, 1, 2, 3, 4

def srd(A, r, lo, size):
    A(f"s_mov_b32 s{r}, s{lo}\ns_mov_b32 s{r+1}, s{lo+1}\ns_mov_b32 s{r+2}, {size}\ns_mov_b32 s{r+3}, 0x20000")

def gen_pack(name):
    A = Asm()
    A("s_cmp_ge_u32 s2, 402\ns_cbranch_scc0 P_go\ns_endpgm\nP_go:")
    A("s_load_dwordx4 s[4:7], s[0:1], 8")
    A("s_load_dwordx8 s[8:15], s[0:1], 32")
    A("s_load_dwordx2 s[16:17], s[0:1], 80")
    A("v_lshrrev_b32 v1, 6, v0\nv_readfirstlane_b32 s18, v1\nv_mov_b32 v30, v0\nv_and_b32 v0, 63, v0")
    A.wait(lg=0)
    srd(A, 24, 16, WS_END)
    A("s_cmp_ge_u32 s2, 128\ns_cbranch_scc1 P_nf")
    A("v_lshlrev_b32 v1, 2, v30\ns_lshl_b32 s3, s2, 10\nv_mov_b32 v2, 0\nbuffer_store_dword v2, v1, s[24:27], s3 offen\nP_nf:")
    A.vm = []
    A("s_mov_b32 s23, 0x20000\ns_mov_b32 s30, 32\ns_mov_b32 s33, 0\ns_mov_b32 s34, 0\ns_mov_b32 s35, 0\ns_mov_b32 s36, 0\ns_mov_b32 s37, 0")
    def div18(dst_q, dst_r, src):
        A(f"s_mul_i32 s{dst_q}, s{src}, 3641\ns_lshr_b32 s{dst_q}, s{dst_q}, 16\ns_mul_i32 s{dst_r}, s{dst_q}, 18\ns_sub_u32 s{dst_r}, s{src}, s{dst_r}")
    A("s_cmp_ge_u32 s2, 144\ns_cbranch_scc1 P_n3")
    div18(40, 41, 2)
    A(f"s_mov_b32 s20, s12\ns_mov_b32 s21, s13\ns_mov_b32 s22, 5308416\ns_mov_b32 s29, 9216")
    A(f"s_mul_i32 s28, s41, {32*9216}\ns_mul_i32 s3, s40, 1152\ns_add_u32 s28, s28, s3")
    A(f"s_mul_i32 s31, s40, {PK3_F}\ns_lshl_b32 s3, s41, 10\ns_add_u32 s31, s31, s3\ns_mul_i32 s3, s18, 18432\ns_add_u32 s31, s31, s3\ns_add_u32 s31, s31, {PK3}\ns_mov_b32 s32, 73728")
    A("s_branch P_dec\nP_n3:")
    A("s_cmp_ge_u32 s2, 288\ns_cbranch_scc1 P_n4")
    A("s_sub_u32 s42, s2, 144"); div18(40, 41, 42)
    A(f"s_mov_b32 s20, s14\ns_mov_b32 s21, s15\ns_mov_b32 s22, 5308416\ns_mov_b32 s29, 1152")
    A(f"s_mul_i32 s28, s42, {32*1152}\ns_add_u32 s41, s41, 3")
    A("s_branch P_d4\nP_n4:")
    A("s_cmp_ge_u32 s2, 312\ns_cbranch_scc1 P_e")
    A("s_sub_u32 s42, s2, 288\ns_mul_i32 s40, s42, 21846\ns_lshr_b32 s40, s40, 16\ns_mul_i32 s41, s40, 3\ns_sub_u32 s41, s42, s41")
    A(f"s_mov_b32 s20, s6\ns_mov_b32 s21, s7\ns_mov_b32 s22, 663552\ns_mov_b32 s29, 1152")
    A(f"s_mul_i32 s28, s40, {72*1152}\ns_mul_i32 s3, s41, {32*1152}\ns_add_u32 s28, s28, s3")
    A("s_cmp_eq_u32 s41, 2\ns_cselect_b32 s30, 8, 32")
    A("P_d4:")
    A(f"s_mul_i32 s31, s40, {PK4_F}\ns_lshl_b32 s3, s41, 10\ns_add_u32 s31, s31, s3\ns_mul_i32 s3, s18, 21504\ns_add_u32 s31, s31, s3\ns_add_u32 s31, s31, {PK4}\ns_mov_b32 s32, 86016")
    A("s_branch P_dec\nP_e:")
    A("s_sub_u32 s42, s2, 312"); div18(40, 41, 42)
    A("s_mov_b32 s33, 1")
    A("s_mov_b32 s20, s4\ns_mov_b32 s21, s5\ns_mov_b32 s22, 1990656\ns_mov_b32 s29, 3456")
    A(f"s_cmp_eq_u32 s40, {MH}\ns_cselect_b32 s20, s8, s20\ns_cselect_b32 s21, s9, s21\ns_cselect_b32 s22, 663552, s22\ns_cselect_b32 s29, 1152, s29")
    A(f"s_cmp_eq_u32 s40, {MX}\ns_cselect_b32 s20, s10, s20\ns_cselect_b32 s21, s11, s21\ns_cselect_b32 s22, 663552, s22\ns_cselect_b32 s29, 1152, s29\ns_cselect_b32 s37, 128, 0\ns_cselect_b32 s36, {2*18432}, 0")
    A("s_mul_i32 s28, s41, s29\ns_lshl_b32 s28, s28, 5")
    A(f"s_mov_b32 s35, 128\ns_cmp_eq_u32 s40, {MK}\ns_cselect_b32 s3, 1152, 0\ns_cselect_b32 s34, 16, 0\ns_cselect_b32 s35, 0, s35\ns_cselect_b32 s36, 128, s36\ns_add_u32 s28, s28, s3")
    A(f"s_cmp_eq_u32 s40, {MV}\ns_cselect_b32 s3, 2304, 0\ns_cselect_b32 s36, {18432+128}, s36\ns_add_u32 s28, s28, s3")
    A(f"s_cmp_eq_u32 s40, {MQ}\ns_cselect_b32 s36, 18432, s36")
    A(f"s_lshl_b32 s38, s41, 10\ns_add_u32 s38, s38, {PKE}")
    A(f"s_mul_i32 s31, s40, 73728\ns_mul_i32 s3, s18, 18432\ns_add_u32 s31, s31, s3\ns_add_u32 s31, s31, s38\ns_mov_b32 s32, {PKE_F}")
    A(f"s_add_u32 s36, s36, s38\ns_add_u32 s36, s36, {5*73728}")
    A("P_dec:")
    A.nop(2)
    A("s_mul_i32 s39, s18, 9216\ns_lshl_b32 s43, s18, 3\ns_and_b32 s44, s18, 1\ns_lshl_b32 s44, s44, 2")
    for j in range(9):
        A(f"v_add_u32 v1, {64*j}, v0\nv_mul_u32_u24 v2, 911, v1\nv_lshrrev_b32 v2, 16, v2")
        A("v_mul_u32_u24 v3, 72, v2\nv_sub_u32 v3, v1, v3")
        A("v_and_b32 v4, 2, v2\nv_or_b32 v4, s44, v4\nv_xor_b32 v3, v3, v4")
        A("v_add_u32 v2, s43, v2\nv_cmp_gt_u32 vcc, s30, v2\nv_mul_lo_u32 v2, v2, s29\nv_lshl_add_u32 v2, v3, 4, v2")
        A(f"v_mov_b32 v4, {OOB}\nv_cndmask_b32 v2, v4, v2, vcc")
        A(f"s_add_u32 m0, s39, {1024*j}\ns_nop 0\nbuffer_load_dwordx4 v2, s[20:23], s28 offen lds")
    A("v_lshrrev_b32 v5, 4, v0\nv_bfe_u32 v6, v0, 2, 2\nv_lshl_add_u32 v7, v5, 3, v6\nv_mul_u32_u24 v7, 1152, v7")
    A("v_lshrrev_b32 v6, 1, v6\nv_and_b32 v8, 1, v5\nv_lshl_or_b32 v6, v8, 1, v6\nv_lshlrev_b32 v6, 5, v6")
    A("v_and_b32 v8, 3, v0\nv_lshlrev_b32 v9, 3, v8\ns_lshl_b32 s3, s18, 5\ns_add_u32 s3, s3, s34\nv_add_u32 v9, s3, v9")
    A("s_lshl_b32 s45, s33, 4\ns_add_u32 s45, s45, 128")
    A("v_lshlrev_b32 v10, 4, v0")
    A("v_lshrrev_b32 v11, 1, v8\ns_lshl_b32 s3, s18, 1\nv_add_u32 v11, s3, v11\nv_mul_u32_u24 v11, 144, v11\nv_and_b32 v12, 1, v8\nv_lshl_add_u32 v11, v12, 3, v11\nv_add_u32 v11, s35, v11")
    A(f"v_bfe_u32 v12, v0, 3, 1\nv_add_u32 v12, s3, v12\ns_mov_b32 s46, {PKE_F}\nv_mul_lo_u32 v12, v12, s46\nv_lshl_add_u32 v12, v5, 8, v12\nv_and_b32 v13, 7, v0\nv_lshl_add_u32 v12, v13, 4, v12")
    A("s_lshl_b32 s3, s32, 3\ns_add_u32 s3, s3, s31\ns_cmp_eq_u32 s33, 1\ns_cselect_b32 s36, s36, s3\ns_cselect_b64 vcc, -1, 0")
    A("v_add_u32 v13, 1024, v9\nv_cndmask_b32 v11, v13, v11, vcc\nv_cndmask_b32 v12, v10, v12, vcc")
    A.wait(vm=0); A("s_barrier")
    for j in range(9):
        src = 9 if j < 8 else 11
        A(f"v_xad_u32 v14, v{src}, v6, v7")
        A(f"ds_read_b64_tr_b16 {v(32+4*j,2)}, v14\nds_read_b64_tr_b16 {v(34+4*j,2)}, v14 offset:4608")
        if j < 7: A("v_add_u32 v9, s45, v9")
    for j in range(8):
        A(f"buffer_store_dwordx4 {v(32+4*j,4)}, v10, s[24:27], s31 offen")
        A("s_add_u32 s31, s31, s32")
    A("buffer_store_dwordx4 v[64:67], v12, s[24:27], s36 offen")
    A("s_add_u32 s36, s36, s37\nbuffer_store_dwordx4 v[64:67], v12, s[24:27], s36 offen")
    A("s_endpgm")
    return kstart(name) + A.text() + "\n"

class Main:
    def __init__(self, c=4, stamps=False, DEP=23):
        self.A = Asm(); self.c = c; self.stamps = stamps; self.DEP = DEP; self.nst = 0; self.nlab = 0
    def stamp(self):
        if self.stamps:
            self.A(f"s_memrealtime {s(66 + 2*self.nst, 2)}"); self.nst += 1
    def lab(self, p):
        self.nlab += 1; return f"L_{p}{self.nlab}"

    def poll_issue(self, vaddr, vdst, typ):
        self.A(f"s_mov_b32 s57, {FL + typ*32768}")
        return self.A(f"buffer_load_dword v{vdst}, v{vaddr}, s[12:15], s57 offen sc1")
    def poll_check(self, vaddr, vdst, typ):
        A = self.A; ok = self.lab("ok"); lp = self.lab("sp")
        A(f"v_cmp_ne_u32 vcc, 1, v{vdst}\ns_mov_b32 s58, 0\ns_mov_b32 s57, {FL + typ*32768}")
        A(f"s_cbranch_vccz {ok}")
        sn = A.snap()
        A(f"{lp}:\nbuffer_load_dword v{vdst}, v{vaddr}, s[12:15], s57 offen sc1\ns_add_u32 s58, s58, 1\ns_cmp_gt_u32 s58, 200000\ns_cbranch_scc1 {ok}")
        A(f"v_cmp_ne_u32 vcc, 1, v{vdst}\ns_cbranch_vccnz {lp}")
        A(f"{ok}:"); A.restore(sn)
    def flag_set(self, typ):
        A = self.A; sk = self.lab("fs")
        A.wait(lg=0)
        A("s_barrier")
        A(f"s_mov_b32 s57, {FL + typ*32768}")
        A(f"buffer_store_dword v{ONE}, v{vFLO}, s[12:15], s57 offen sc1")

    def gen(self, name):
        A = self.A; c = self.c; per = 8 // c; lg = {1:0,2:1,4:2,8:3}
        A("s_cmp_ge_u32 s2, 256\ns_cbranch_scc0 M_go\ns_endpgm\nM_go:")
        self.stamp()
        A("s_load_dwordx2 s[4:5], s[0:1], 0\ns_load_dwordx2 s[6:7], s[0:1], 64\ns_load_dwordx2 s[20:21], s[0:1], 80")
        A(f"v_lshrrev_b32 v1, 6, v0\nv_mov_b32 v{vTID}, v0\nv_readfirstlane_b32 s{sW}, v1\nv_and_b32 v0, 63, v0")
        A("s_and_b32 s22, s2, 7\ns_lshr_b32 s23, s2, 3")
        A(f"s_and_b32 s{sF}, s22, {c-1}\ns_lshl_b32 s{sF}, s{sF}, {lg[per]}\ns_and_b32 s3, s23, {per-1}\ns_add_u32 s{sF}, s{sF}, s3")
        A(f"s_lshr_b32 s{sM}, s22, {lg[c]}\ns_mul_i32 s{sM}, s{sM}, {32//per}\ns_lshr_b32 s3, s23, {lg[per]}\ns_add_u32 s{sM}, s{sM}, s3")
        t0, t1, t2, t3 = TMP, TMP+1, TMP+2, TMP+3
        A(f"v_and_b32 v{vI}, 15, v0\nv_lshrrev_b32 v{vQ}, 4, v0\nv_lshlrev_b32 v{vL16}, 4, v0")
        A(f"s_lshl_b32 s3, s{sM}, 2\ns_add_u32 s3, s3, s{sW}\ns_lshl_b32 s3, s3, 4\nv_add_u32 v{t0}, s3, v{vI}\nv_mul_u32_u24 v{t0}, 1152, v{t0}\nv_lshl_add_u32 v{t0}, v{vQ}, 4, v{t0}")
        A.wait(lg=0)
        srd(A, 8, 4, 2359296); srd(A, 12, 20, WS_END); srd(A, 16, 6, 2359296)
        for ks in range(18): A(f"buffer_load_dwordx4 {v(S0+4*ks,4)}, v{t0}, s[8:11], 0 offen offset:{64*ks}")
        A(f"s_mul_i32 s{sE}, s{sF}, {PKE_F}\ns_add_u32 s{sE}, s{sE}, {PKE}\ns_add_u32 s{sSH}, s{sE}, {5*73728}\ns_mul_i32 s3, s{sW}, 18432\ns_add_u32 s{sE}, s{sE}, s3")
        self.build_stream()
        for i in range(18): self.load(i)
        self.nl = 18
        self.dma_shared(0, LSH0); idsh = self.dma_shared(1, LSH1)
        while self.nl < self.DEP: self.load(self.nl); self.nl += 1
        A(f"s_mul_i32 s22, s{sM}, 57\ns_lshr_b32 s22, s22, 9\ns_mul_i32 s22, s22, 9\ns_sub_u32 s22, s{sM}, s22")
        A(f"s_mul_i32 s23, s{sF}, {PK3_F}\ns_add_u32 s23, s23, s3\ns_add_u32 s23, s23, {PK3}")
        for p in range(9):
            A(f"s_mul_i32 {s(sB3+p)}, s22, 73728\ns_add_u32 {s(sB3+p)}, {s(sB3+p)}, s23\ns_lshl_b32 {s(sK4+p)}, s22, 11\ns_add_u32 s22, s22, 1\ns_cmp_eq_u32 s22, 9\ns_cselect_b32 s22, 0, s22")
        A(f"s_add_u32 s{sOWN}, s{sF}, s{sM}\ns_and_b32 s{sOWN}, s{sOWN}, 7")
        A(f"s_mul_i32 s{sP4}, s{sF}, {PK4_F}\ns_mul_i32 s3, s{sW}, 21504\ns_add_u32 s{sP4}, s{sP4}, s3\ns_add_u32 s{sP4}, s{sP4}, {PK4}")
        A(f"s_mul_i32 s{sCL}, s{sM}, 73728")
        A(f"s_mul_i32 s{sPT}, s{sM}, {9*65536}\ns_add_u32 s{sPT}, s{sPT}, {PART}")
        A(f"s_lshl_b32 s3, s{sW}, 8\nv_lshlrev_b32 v{t0}, 4, v{vI}\nv_add_u32 v{t0}, s3, v{t0}")
        A(f"v_lshl_add_u32 v{vA}, v{vQ}, 10, v{t0}")
        A(f"v_lshrrev_b32 v{t1}, 1, v{vQ}\nv_and_b32 v{t2}, 1, v{vQ}\ns_lshl_b32 s3, s{sW}, 11\nv_lshl_add_u32 v{t1}, v{t1}, 10, s3")
        A(f"v_lshl_add_u32 v{t3}, v{t2}, 3, v{t0}\nv_add_u32 v{vD}, v{t1}, v{t3}")
        A(f"s_mul_i32 s{sF9}, s{sF}, 9216\ns_add_u32 s3, s{sF9}, 8192\nv_add_u32 v{vGS}, s3, v{t3}")
        A(f"v_lshlrev_b32 v{t2}, 8, v{t2}\nv_xor_b32 v{t2}, v{t2}, v{t0}\nv_add3_u32 v{vG}, v{t1}, v{t2}, s{sF9}\nv_xor_b32 v{vG+1}, 512, v{vG}")
        for u in range(1, 4): A(f"v_xor_b32 v{vA+u}, {u*256}, v{vA}\nv_xor_b32 v{vD+u}, {u*256}, v{vD}")
        for u in range(4): A(f"v_add_u32 v{vA2+u}, 36864, v{vA+u}")
        A(f"v_mov_b32 v{ONE}, 1\nv_add_u32 v{vSHR}, {LSH0}, v{vL16}")
        A(f"s_lshl_b32 s3, s{sM}, 3\ns_add_u32 s3, s3, s{sF}\ns_lshl_b32 s3, s3, 7\nv_mov_b32 v{t0}, s3\nv_mov_b32 v{t1}, {OOB}\nv_cmp_eq_u32 vcc, 0, v{vTID}\nv_cndmask_b32 v{vFLO}, v{t1}, v{t0}, vcc")
        self.stamp()
        self.layernorm(first=True)
        A.wait_id(idsh); A.wait(lg=0); A("s_barrier")
        self.stamp()
        for u in range(4):
            A(f"v_bfe_u32 v{t0}, v{vA+u}, 2, 8\nv_add_u32 v{t0}, {LR2}, v{t0}\nds_read_b32 v{R2+u}, v{t0}")
            A(f"v_add_u32 v{t0}, s{sF9}, v{vD+u}\nds_read_b64 {R('a',XN+2*u,2)}, v{t0}")
        A(f"ds_read_b64 {R('a',XN+8,2)}, v{vGS}")
        self.panel(jit="A3", shared=LSH0)
        self.stamp()
        self.epi_h()
        self.stamp()
        st = {}
        def pub_h():
            A.wait_id(self.last_store); self.flag_set(0)
            st["shx"] = self.dma_shared(2, LSH0)
        self.panel(hooks={8: pub_h}, fill=self.epi_k_shared())
        def poll1_issue():
            A(f"s_and_b32 s3, s{sW}, 1\ns_lshl_b32 s3, s3, 1\ns_add_u32 s3, s3, s{sM}\ns_sub_u32 s3, s3, 1\ns_cmp_lt_u32 s3, 32\ns_cselect_b32 s3, s3, s{sM}")
            A(f"v_mov_b32 v{vP}, s{sM}\nv_mov_b32 v{vP+1}, s3\nv_and_b32 v{vP+2}, 2, v0\nv_cmp_eq_u32 vcc, 0, v{vP+2}\nv_cndmask_b32 v{vP}, v{vP+1}, v{vP}, vcc")
            A(f"v_and_b32 v{vP+1}, 1, v0\nv_lshl_add_u32 v{vP}, v{vP}, 3, v{vP+1}\ns_lshl_b32 s3, s{sW}, 1\nv_add_lshl_u32 v{vP}, v{vP}, s3, 7")
            self.poll_issue(vP, vP+1, 0)
        self.panel(shared=LSH1, fill=self.epi_kq(LK, 640, 2, 16), hooks={14: poll1_issue})
        def gather_check():
            self.poll_check(vP, vP+1, 0)
            A(f"s_lshr_b32 s3, s{sW}, 1\ns_add_u32 s3, s3, 1\ns_sub_u32 s22, 0, s3\ns_bitcmp1_b32 s{sW}, 0\ns_cselect_b32 s3, s3, s22\ns_lshl_b32 s22, s{sM}, 6\ns_add_u32 s3, s3, s22")
            A(f"v_add_u32 v{vP}, s3, v0\nv_cmp_gt_u32 vcc, 2048, v{vP}\nv_lshrrev_b32 v{vP+1}, 6, v{vP}\nv_mul_u32_u24 v{vP+1}, 73728, v{vP+1}\nv_and_b32 v{vP}, 63, v{vP}\nv_lshl_add_u32 v{vP}, v{vP}, 4, v{vP+1}")
            A(f"v_mov_b32 v{vP+1}, {OOB}\nv_cndmask_b32 v{vP}, v{vP+1}, v{vP}, vcc\ns_mul_i32 s59, s{sW}, 18432")
        def gather_dma(j0):
            def f():
                A(f"s_add_u32 m0, s59, {j0*1024}\ns_add_u32 s57, s59, {H1 + j0*1024}")
                for j in range(3): st["g"] = A(f"buffer_load_dwordx4 v{vP}, s[12:15], s57 offen offset:{j*1024} sc1 lds")
            return f
        hk = {3: gather_check}
        for j in range(6): hk[4 + j] = gather_dma(3 * j)
        self.panel(fill=self.epi_v(), hooks=hk)
        for sl in self.epi_kq(LQ, 512, 0, 0):
            for x in sl: A(x)
        self.stamp()
        A.wait_id(st["g"]); A.wait(lg=0); A("s_barrier")
        self.stamp()
        def halo_pub():
            h0, h1 = vH, vH+1
            A(f"v_lshrrev_b32 v{t0}, 4, v{vTID}\nv_mul_u32_u24 v{t0}, 1280, v{t0}\nv_lshl_add_u32 v{t0}, v{vI}, 4, v{t0}\nv_add_u32 v{h0}, {LV}, v{t0}")
            A(f"v_subrev_u32 v{t1}, 32, v{vTID}\nv_lshrrev_b32 v{t2}, 3, v{t1}\nv_mul_u32_u24 v{t2}, 640, v{t2}\nv_and_b32 v{t1}, 7, v{t1}\nv_lshl_add_u32 v{t2}, v{t1}, 4, v{t2}\nv_add_u32 v{t2}, {LK}, v{t2}")
            A(f"v_add_u32 v{t1}, {16*1280}, v{h0}\nv_cmp_gt_u32 vcc, 32, v{vTID}\nv_cndmask_b32 v{h1}, v{t2}, v{t1}, vcc")
            A(f"v_mov_b32 v{t1}, 512\nv_mov_b32 v{t2}, 1024\nv_cndmask_b32 v{t1}, v{t1}, v{t2}, vcc")
            A(f"v_mov_b32 v{t2}, {LR2}\nv_cmp_gt_u32 vcc, 176, v{vTID}\nv_cndmask_b32 v{h1}, v{t2}, v{h1}, vcc\nv_cndmask_b32 v{t1}, 0, v{t1}, vcc\nv_add_u32 v{t1}, v{t1}, v{h1}")
            A(f"ds_read_b128 {v(OUT,4)}, v{h0} offset:1024\nds_read_b128 {v(OUT+4,4)}, v{t1}")
            A(f"s_lshl_b32 s3, s{sM}, 3\ns_add_u32 s3, s3, s{sF}\ns_lshl_b32 s3, s3, 13\ns_add_u32 s{sKV}, s3, {KVH}\nv_lshlrev_b32 v{vH+2}, 4, v{vTID}")
        def halo_pub2():
            A(f"s_add_u32 s57, s{sKV}, 4096")
            A(f"buffer_store_dwordx4 {v(OUT,4)}, v{vH+2}, s[12:15], s{sKV} offen sc1")
            A(f"buffer_store_dwordx4 {v(OUT+4,4)}, v{vH+2}, s[12:15], s57 offen sc1")
            A(f"s_min_u32 s3, s{sW}, 2\ns_lshl_b32 s3, s3, 10\ns_add_u32 s3, s3, {LO + 9*1024}\nv_add_u32 v{t0}, s3, v{vL16}")
            A(f"v_mov_b32 v{t2}, 0\nv_mov_b32 v{t3}, 0\nds_write_b64 v{t0}, {v(t2,2)}\nds_write_b64 v{t0}, {v(t2,2)} offset:8")
        self.panel(jit="A4", shared=LSH0, hooks={2: halo_pub, 5: halo_pub2}, fill=self.pre_x())
        self.stamp()
        self.epi_x()
        A.wait_id(self.last_store); self.flag_set(2)
        self.stamp()
        A(f"s_sub_u32 s3, s{sM}, 1\ns_max_i32 s3, s3, 0\ns_lshl_b32 s3, s3, 3\ns_add_u32 s3, s3, s{sF}\ns_lshl_b32 s3, s3, 7\nv_mov_b32 v{vP}, s3")
        A(f"v_and_b32 v{vP+1}, 7, v0\ns_lshl_b32 s3, s{sM}, 3\nv_add_lshl_u32 v{vP+1}, v{vP+1}, s3, 7\nv_cmp_gt_u32 vcc, 32, v0\nv_cndmask_b32 v{vP}, v{vP}, v{vP+1}, vcc")
        self.poll_issue(vP, vP+1, 2); self.poll_check(vP, vP+1, 2)
        self.stamp()
        A(f"s_cmp_eq_u32 s{sM}, 0\ns_cselect_b32 s3, {OOB}, 0\nv_add_u32 v{vH+2}, s3, v{vH+2}\ns_sub_u32 s{sKV}, s{sKV}, 65536\ns_add_u32 s57, s{sKV}, 4096")
        A(f"buffer_load_dwordx4 {v(OUT,4)}, v{vH+2}, s[12:15], s{sKV} offen sc1\nbuffer_load_dwordx4 {v(OUT+4,4)}, v{vH+2}, s[12:15], s57 offen sc1")
        A(f"ds_write_b128 v{vH}, {v(OUT,4)}\nds_write_b128 v{vH+1}, {v(OUT+4,4)}")
        A.wait(lg=0); A("s_barrier")
        self.attention()
        self.stamp()
        for ks in range(18):
            A(f"s_add_u32 s57, s{sCL}, {X1 + ks*4096}\nbuffer_load_dwordx4 {v(S0+4*ks,4)}, v{vA}, s[12:15], s57 offen sc1")
        self.layernorm(first=False)
        A.wait(lg=0); A("s_barrier")
        self.stamp()
        fill = None
        for p in range(9):
            hk = {}
            if p == 1: hk[1] = lambda: A("s_barrier")
            self.panel(jit="A3" if p == 0 else None, fill=fill, hooks=hk)
            fill = self.epi_g3(p)
        for sl in fill:
            for x in sl: A(x)
        A.wait(lg=0); A("s_barrier")
        self.stamp()
        fill = None
        for p in range(9):
            hk = {}
            if p == 8:
                def pub_p():
                    A.wait_id(self.last_store); self.flag_set(3)
                hk[16] = pub_p
            self.panel(jit="H4" if p == 0 else None, fill=fill, hooks=hk, nk=21)
            if p < 8: fill = self.epi_g4(p)
        self.stamp()
        self.final()
        self.stamp()
        if self.stamps:
            A.wait(vm=0, lg=0)
            A(f"s_memrealtime {s(66 + 2*self.nst, 2)}"); self.nst += 1
            A(f"s_lshl_b32 s3, s2, 2\ns_add_u32 s3, s3, s{sW}\ns_lshl_b32 s3, s3, 7\ns_add_u32 s3, s3, {STAMP}\nv_mov_b32 v1, 0")
            for i in range(self.nst):
                A(f"v_mov_b32 v2, {s(66+2*i)}\nbuffer_store_dword v2, v1, s[12:15], s3 offen offset:{4*i}")
        A("s_endpgm")
        return kstart(name) + A.text() + "\n"

    def build_stream(self):
        S = []
        for mat in (MH, MK, MV, MQ, MX):
            for ks in range(18): S.append((f"s_add_u32 s56, s{sE}, {mat*73728 + ks*1024}" if ks % 4 == 0 else None, (ks % 4) * 1024))
        for p in range(9):
            for ks in range(18): S.append((f"s_add_u32 s56, {s(sB3+p)}, {ks*1024}" if ks % 4 == 0 else None, (ks % 4) * 1024))
        for p in range(9):
            for ks in range(21):
                if ks == 0:
                    if p == 0: pre = f"s_add_u32 s{sPB}, s{sP4}, {8*86016}\ns_mov_b32 s56, s{sPB}"
                    else: pre = f"s_add_u32 s56, s{sOWN}, {p}\ns_and_b32 s56, s56, 7\ns_mul_i32 s56, s56, 86016\ns_add_u32 s56, s56, s{sP4}\ns_mov_b32 s{sPB}, s56"
                    S.append((pre, 0))
                elif ks < 3: S.append((None, ks * 1024))
                elif (ks - 3) % 2 == 0:
                    pre = f"s_add_u32 s56, s{sPB}, {s(sK4 + (ks-3)//2)}"
                    if ks == 3: pre = f"s_add_u32 s{sPB}, s{sPB}, 3072\n" + pre
                    S.append((pre, 0))
                else: S.append((None, 1024))
        self.S = S; self.cur = 0; self.npanel = 0
    def wreg(self, i): return RING + 4 * (i % (self.DEP + 1))
    def load(self, i):
        if i >= len(self.S): return
        pre, off = self.S[i]
        if pre: self.A(pre)
        self.A(f"buffer_load_dwordx4 {v(self.wreg(i),4)}, v{vL16}, s[12:15], s56 offen offset:{off}")
    def dma_shared(self, idx, dst):
        A = self.A
        A(f"s_mul_i32 s59, s{sW}, 5\ns_min_u32 s59, s59, 13\ns_lshl_b32 s59, s59, 10\ns_add_u32 m0, s59, {dst}\ns_add_u32 s59, s59, s{sSH}\ns_add_u32 s59, s59, {idx*18432}")
        for j in range(4): A(f"buffer_load_dwordx4 v{vL16}, s[12:15], s59 offen offset:{j*1024} lds")
        A("s_add_u32 m0, m0, 4096\ns_add_u32 s59, s59, 4096")
        return A(f"buffer_load_dwordx4 v{vL16}, s[12:15], s59 offen lds")

    def breg(self, nk, ks, u):
        if nk == 21:
            if ks < 3:
                j = ks * 4 + u
                return R("a", 216 + 4 * j, 4) if j < 10 else v(XB + 4 * (j - 10), 4)
            ks -= 3
        return v(S0 + 4 * ks, 4) if u == 0 else R("a", (ks * 3 + u - 1) * 4, 4)
    def bread(self, jit, nk, ks):
        A = self.A
        for u in range(0 if jit[1] == "4" else 1, 4):
            if nk == 21 and ks < 3: base, off = vA2 + u, LO - 36864 + ks * 4096
            else:
                off = (ks - (3 if nk == 21 else 0)) * 4096; base = vA + u
                if off >= 36864: off -= 36864; base = vA2 + u
            A(f"ds_read_b128 {self.breg(nk, ks, u)}, v{base} offset:{off}")
    def panel(self, jit=None, shared=None, fill=None, hooks={}, nk=18):
        A = self.A; acc = ACC + 16 * (self.npanel % 2); self.npanel += 1; self.acc = acc
        fill = list(fill) if fill else []
        LAH = 2; skip = 3
        def pre(ks):
            if ks >= nk: return
            if jit: self.bread(jit, nk, ks)
            if shared is not None: A(f"ds_read_b128 {R('a', SHF + 4*(ks % 3), 4)}, v{vSHR} offset:{shared - LSH0 + ks*1024}")
        for k in range(LAH): pre(k)
        for ks in range(nk):
            i = self.cur; self.cur += 1
            for u in range(4):
                d = v(acc + 4*u, 4)
                A(f"v_mfma_f32_16x16x32_bf16 {d}, {v(self.wreg(i),4)}, {self.breg(nk, ks, u)}, {d if ks else 0}")
                if u == 0: self.load(self.nl); self.nl += 1
                if u == 1: pre(ks + LAH)
                if u == 2 and ks in hooks: hooks[ks]()
                if skip: skip -= 1
                elif fill:
                    for x in fill.pop(0): self.emit(x)
            if shared is not None:
                d = v(SACC, 4)
                A(f"v_mfma_f32_16x16x32_bf16 {d}, {R('a', SHF + 4*(ks % 3), 4)}, {self.breg(nk, ks, 0)}, {d if ks else 0}")
        for sl in fill:
            for x in sl: self.emit(x)
    def emit(self, x):
        r = self.A(x)
        if "buffer_store" in x: self.last_store = r

    def layernorm(self, first):
        A = self.A; a = ACC
        A("s_mov_b32 s3, 0x3f803f80")
        for j in range(72):
            k = j % 2
            A(f"v_dot2_f32_bf16 v{a+k}, v{S0+j}, s3, {'v%d' % (a+k) if j > 1 else 0}")
            A(f"v_dot2_f32_bf16 v{a+2+k}, v{S0+j}, v{S0+j}, {'v%d' % (a+2+k) if j > 1 else 0}")
        A(f"v_add_f32 v{a}, v{a}, v{a+1}\nv_add_f32 v{a+2}, v{a+2}, v{a+3}")
        for op in ("v_permlane32_swap_b32", "v_permlane16_swap_b32"):
            A(f"v_mov_b32 v{a+1}, v{a}\nv_mov_b32 v{a+3}, v{a+2}\n{op} v{a}, v{a+1}\n{op} v{a+2}, v{a+3}")
            A(f"v_add_f32 v{a}, v{a}, v{a+1}\nv_add_f32 v{a+2}, v{a+2}, v{a+3}")
        A(f"v_mul_f32 v{a}, {fl(1/576)}, v{a}\nv_mul_f32 v{a+2}, {fl(1/576)}, v{a+2}")
        A(f"v_fma_f32 v{a+2}, -v{a}, v{a}, v{a+2}\nv_max_f32 v{a+2}, 0, v{a+2}\nv_add_f32 v{a+3}, {fl(EPS)}, v{a+2}\nv_rsq_f32 v{a+4}, v{a+3}")
        if first:
            A(f"v_mul_f32 v{a+6}, v{a+4}, v{a+4}\nv_fmaak_f32 v{a+6}, v{a+6}, v{a+2}, {fl(EPS)}\nv_rsq_f32 v{a+6}, v{a+6}")
            A(f"v_bfe_u32 v{a+7}, v{vA}, 2, 8\nv_add_u32 v{a+7}, {LR2}, v{a+7}\nv_mul_f32 v{a+6}, {fl(-AS)}, v{a+6}\nds_write_b32 v{a+7}, v{a+6}")
        else: A(f"v_mul_f32 v{a+4}, {fl(-AS)}, v{a+4}")
        A(f"v_mul_f32 v{a+5}, v{a}, v{a+4}\nv_sub_f32 v{a+5}, 0, v{a+5}")
        for ks in range(18):
            for e in range(4):
                r = S0 + 4*ks + e; t = a + 8 + 2*e
                A(f"v_lshlrev_b32 v{t}, 16, v{r}\nv_and_b32 v{t+1}, 0xffff0000, v{r}")
            for e in range(4):
                t = a + 8 + 2*e
                A(f"v_pk_fma_f32 {v(t,2)}, {v(t,2)}, {v(a+4,2)}, {v(a+4,2)} op_sel:[0,0,1] op_sel_hi:[1,0,1]")
            for e in range(4):
                r = S0 + 4*ks + e; t = a + 8 + 2*e
                A(f"v_cvt_pk_bf16_f32 v{r}, v{t}, v{t+1}")
            off = ks * 4096
            A(f"ds_write_b128 v{vA if off < 36864 else vA2}, {v(S0+4*ks,4)} offset:{off if off < 36864 else off - 36864}")

    def gelu_pk(self, src, scale, dst):
        A = self.A; t = TMP; sp = scale & ~1; hi = scale & 1
        for e in (0, 2): A(f"v_pk_mul_f32 {v(src+e,2)}, {v(src+e,2)}, {v(sp,2)} op_sel:[0,{hi}] op_sel_hi:[1,{hi}]")
        for e in (0, 2): A(f"v_pk_fma_f32 {v(t+e,2)}, {v(src+e,2)}, {v(src+e,2)}, s[60:61]")
        for e in (0, 2): A(f"v_pk_mul_f32 {v(t+e,2)}, {v(t+e,2)}, {v(src+e,2)}")
        for e in range(4): A(f"v_exp_f32 v{t+e}, v{t+e}")
        for e in (0, 2): A(f"v_pk_add_f32 {v(t+e,2)}, {v(t+e,2)}, s[62:63]")
        for e in range(4): A(f"v_rcp_f32 v{t+e}, v{t+e}")
        for e in (0, 2): A(f"v_pk_mul_f32 {v(t+e,2)}, {v(t+e,2)}, {v(src+e,2)}")
        for e in (0, 2): A(f"v_cvt_pk_bf16_f32 v{dst+e//2}, v{t+e}, v{t+e+1}")
    def pub_pair(self, tp, base):
        A = self.A; o = OUT + 4*tp
        A(f"v_permlane16_swap_b32 v{o}, v{o+2}\nv_permlane16_swap_b32 v{o+1}, v{o+3}")
        self.emit(f"buffer_store_dwordx4 {v(o,4)}, v{vG+tp}, s[12:15], s{base} offen sc1")
    def pub_shared(self, r, base):
        A = self.A
        A("s_mov_b32 exec_hi, 0")
        self.emit(f"buffer_store_dwordx2 {v(r,2)}, v{vGS}, s[12:15], s{base} offen sc1")
        A("s_mov_b32 exec_hi, -1")
    def epi_h(self):
        A = self.A; acc = self.acc
        A(f"s_mov_b32 s60, {fl(KG)}\ns_mov_b32 s61, s60\ns_mov_b32 s62, 1.0\ns_mov_b32 s63, 1.0\ns_add_u32 s59, s{sCL}, {H1}")
        for tp in range(2):
            for e in range(2): self.gelu_pk(acc + 8*tp + 4*e, R2 + 2*tp + e, OUT + 4*tp + 2*e)
            self.pub_pair(tp, 59)
        A(f"v_cvt_pk_bf16_f32 v{KS}, v{SACC}, v{SACC+1}\nv_cvt_pk_bf16_f32 v{KS+1}, v{SACC+2}, v{SACC+3}")
        self.gelu_pk(SACC, R2, TMP + 4)
        self.pub_shared(TMP + 4, 59)
    def epi_k_shared(self):
        t = TMP
        return [[f"v_and_b32 v{t}, 1, v{vQ}", f"v_mul_u32_u24 v{t}, 640, v{t}"], [f"v_bfe_u32 v{t+1}, v{vA}, 1, 9", f"s_mov_b32 s3, {LK+128}\nv_add3_u32 v{t}, v{t}, v{t+1}, s3"],
                [f"s_mov_b32 exec_lo, 0\nds_write_b64 v{t}, {v(KS,2)}\ns_mov_b32 exec_lo, -1"]]
    def epi_kq(self, base, stride, q0, tok0):
        acc = self.acc; t = TMP
        L = [[f"s_lshl_b32 s3, s{sW}, 2\ns_add_u32 s3, s3, {q0}\nv_add_u32 v{t}, s3, v{vQ}", f"v_mul_u32_u24 v{t}, {stride}, v{t}"], [f"v_add_u32 v{t}, {base + tok0*8}, v{t}"]]
        for u in range(4):
            L.append([f"v_bfe_u32 v{t+1}, v{vA+u}, 1, 9", f"v_add_u32 v{t+1}, v{t}, v{t+1}"])
            L.append([f"v_cvt_pk_bf16_f32 v{OUT+2*u}, v{acc+4*u}, v{acc+4*u+1}", f"v_cvt_pk_bf16_f32 v{OUT+2*u+1}, v{acc+4*u+2}, v{acc+4*u+3}"])
            L.append([f"ds_write_b64 v{t+1}, {v(OUT+2*u,2)}"])
        return L
    def epi_v(self):
        acc = self.acc; t = TMP
        L = [[f"s_mul_i32 s3, s{sW}, 5120\ns_add_u32 s3, s3, {LV+256}\nv_lshl_add_u32 v{t}, v{vQ}, 8, s3"]]
        for u in range(4):
            L.append([f"v_add_u32 v{t+1}, v{t}, v{vA+u}", f"ds_write_b128 v{t+1}, {v(acc+4*u,4)}"])
        L.append([f"v_cvt_pk_bf16_f32 v{OUT}, v{SACC}, v{SACC+1}", f"v_cvt_pk_bf16_f32 v{OUT+1}, v{SACC+2}, v{SACC+3}"])
        L.append([f"v_lshrrev_b32 v{t+1}, 1, v{vA}", f"v_add_u32 v{t+1}, {LQ + 16*512}, v{t+1}"])
        L.append([f"s_mov_b32 exec_hi, 0\nds_write_b64 v{t+1}, {v(OUT,2)}\ns_mov_b32 exec_hi, -1"])
        L.append([f"v_lshl_add_u32 v{t+1}, v{vQ}, 8, v{vA}", f"v_add_u32 v{t+1}, {LV + 256 + 14*1280}, v{t+1}"])
        L.append([f"s_mov_b32 exec_lo, 0\nds_write_b128 v{t+1}, {v(SACC,4)}\ns_mov_b32 exec_lo, -1"])
        return L
    def epi_x(self):
        A = self.A; acc = self.acc; t = TMP
        A(f"s_mov_b32 s60, {fl(-1/AS)}\ns_mov_b32 s61, s60\ns_add_u32 s59, s{sCL}, {X1}")
        oth = ACC + 16 - (acc - ACC)
        def four(src, xn, dst):
            for e in range(2): A(f"v_pk_fma_f32 {v(xn+2*e,2)}, {v(src+2*e,2)}, s[60:61], {v(xn+2*e,2)}")
            for e in range(2): A(f"v_cvt_pk_bf16_f32 v{dst+e}, v{xn+2*e}, v{xn+2*e+1}")
        for tp in range(2):
            for e in range(2): four(acc + 8*tp + 4*e, oth + 8*tp + 4*e, OUT + 4*tp + 2*e)
            self.pub_pair(tp, 59)
        four(SACC, XB, TMP + 4)
        self.pub_shared(TMP + 4, 59)
    def pre_x(self):
        oth = self.acc; L = []
        for k in range(10):
            d = oth + 2*k if k < 8 else XB + 2*(k-8)
            L.append([f"v_accvgpr_read_b32 v{d+1}, a{XN+k}"])
            L.append([f"v_lshlrev_b32 v{d}, 16, v{d+1}", f"v_and_b32 v{d+1}, 0xffff0000, v{d+1}"])
        return L
    def epi_g3(self, p):
        acc = self.acc; n = 16
        T = lambda i: TMP + (i % 6)
        fm = lambda i: f"v_fmaak_f32 v{T(i)}, v{acc+i}, v{acc+i}, {fl(KG)}"
        m1 = lambda i: f"v_mul_f32 v{T(i)}, v{T(i)}, v{acc+i}"
        ex = lambda i: f"v_exp_f32 v{T(i)}, v{T(i)}"
        ad = lambda i: f"v_add_f32 v{T(i)}, 1.0, v{T(i)}"
        rc = lambda i: f"v_rcp_f32 v{T(i)}, v{T(i)}"
        cv = lambda i: f"v_cvt_pk_bf16_f32 v{OUT + i//2}, v{T(i)}, v{T(i+1)}"
        S = []; ok = lambda i: 0 <= i < n
        if p == 8: S.append([f"v_add_u32 v{vD+u}, 8192, v{vD+u}" for u in range(4)])
        for j in range(n + 1):
            a = [f(i) for f, i in ((fm, j), (ad, j-1)) if ok(i)]
            if a: S.append(a)
            if ok(j-1): S.append([rc(j-1)])
            b = [f(i) for f, i in ((m1, j), (m1, j-1)) if ok(i)]
            if b: S.append(b)
            if ok(j): S.append([ex(j)])
            if j % 4 == 0 and j >= 4:
                u = j // 4 - 1
                S.append([cv(j-4), cv(j-2), f"ds_write_b64 v{vD+u}, {v(OUT+2*u,2)} offset:{min(p,7)*8192}"])
        return S
    def epi_g4(self, p):
        acc = self.acc; S = []
        if p == 0: S.append([f"s_lshl_b32 s3, s{sF}, 13\ns_lshl_b32 s22, s{sW}, 11\ns_add_u32 s3, s3, s22\ns_add_u32 s{sPS}, s3, s{sPT}\ns_add_u32 s59, s{sPS}, {8*65536}"])
        else: S.append([f"s_add_u32 s59, s{sOWN}, {p}\ns_and_b32 s59, s59, 7\ns_lshl_b32 s59, s59, 16\ns_add_u32 s59, s59, s{sPS}"])
        for tp in range(2):
            for k in (0, 4): S.append([f"v_cvt_pk_bf16_f32 v{OUT+4*tp+(k+e)//2}, v{acc+8*tp+k+e}, v{acc+8*tp+k+e+1}" for e in (0, 2)])
            S.append([f"buffer_store_dwordx4 {v(OUT+4*tp,4)}, v{vL16}, s[12:15], s59 offen offset:{tp*1024} sc1"])
            if tp == 0 and p < 7: S += [[] for _ in range(30)]
        return S

    def attention(self):
        A = self.A
        Qr = S0; Kr = [S0 + 10, S0 + 20]; Vr = [S0 + 30, S0 + 50]; Lg = ACC; O = ACC + 8; t = TMP
        ak, akh, av, avh = ACC + 26, ACC + 27, ACC + 28, ACC + 29
        A(f"s_lshr_b32 s22, s{sW}, 1\ns_mul_i32 s22, s22, 9\ns_and_b32 s23, s{sW}, 1\ns_mul_i32 s3, s23, 5\ns_add_u32 s64, s22, s3\ns_add_u32 s65, s22, 4")
        A(f"v_lshlrev_b32 v{t}, 3, v0")
        A(f"s_lshl_b32 s3, s64, 9\ns_add_u32 s3, s3, {LQ}\nv_add_u32 v{t+1}, s3, v{t}")
        for c in range(4): A(f"ds_read_b64 {v(Qr+2*c,2)}, v{t+1} offset:{c*512}")
        A(f"s_lshl_b32 s3, s65, 9\ns_lshl_b32 s22, s23, 2\ns_add_u32 s3, s3, s22\ns_add_u32 s3, s3, {LQ}\nv_add_u32 v{t+2}, s3, v{t}\nds_read_b32 v{Qr+8}, v{t+2}")
        A(f"s_mul_i32 s3, s64, 640\ns_add_u32 s59, s3, {LK+16}\nv_add_u32 v{ak}, s59, v{t}\ns_lshl_b32 s3, s3, 1\ns_add_u32 s3, s3, {LV+32}\nv_add_u32 v{av}, s3, v{vL16}")
        A(f"s_mul_i32 s3, s65, 640\ns_add_u32 s3, s3, s22\ns_add_u32 s59, s3, {LK+16}\nv_add_u32 v{akh}, s59, v{t}\ns_lshl_b32 s3, s3, 1\ns_add_u32 s3, s3, {LV+32}\nv_add_u32 v{avh}, s3, v{vL16}")
        def rk(j):
            for c in range(4): A(f"ds_read_b64 {v(Kr[j%2]+2*c,2)}, v{ak} offset:{c*640 + (14-2*j)*8}")
            A(f"ds_read_b32 v{Kr[j%2]+8}, v{akh} offset:{(14-2*j)*8}")
        def rv(j):
            for c in range(4): A(f"ds_read_b128 {v(Vr[j%2]+4*c,4)}, v{av} offset:{c*1280 + (14-2*j)*16}")
            A(f"ds_read_b64 {v(Vr[j%2]+16,2)}, v{avh} offset:{(14-2*j)*16}")
        rk(0); rk(1)
        for j in range(8):
            for d in range(9): A(f"v_dot2_f32_bf16 v{Lg+j}, v{Qr+d}, v{Kr[j%2]+d}, {'v%d' % (Lg+j) if d else 0}")
            if j + 2 < 8: rk(j + 2)
            elif j == 6: rv(0)
            else: rv(1)
        A(f"s_lshl_b32 s3, s{sM}, 6\nv_add_u32 v{t}, s3, v0\nv_mov_b32 v{t+1}, {fl(-1e9 * 18 ** 0.5)}")
        for j in range(1, 8): A(f"v_cmp_gt_u32 vcc, {2*j}, v{t}\nv_cndmask_b32 v{Lg+j}, v{Lg+j}, v{t+1}, vcc")
        A(f"v_max3_f32 v{t}, v{Lg}, v{Lg+1}, v{Lg+2}\nv_max3_f32 v{t+1}, v{Lg+3}, v{Lg+4}, v{Lg+5}\nv_max3_f32 v{t}, v{t}, v{Lg+6}, v{Lg+7}\nv_max_f32 v{t}, v{t}, v{t+1}")
        for j in range(8): A(f"v_sub_f32 v{Lg+j}, v{Lg+j}, v{t}")
        for j in range(8): A(f"v_mul_f32 v{Lg+j}, {fl(SCL)}, v{Lg+j}")
        for j in range(8): A(f"v_exp_f32 v{Lg+j}, v{Lg+j}")
        A(f"v_pk_add_f32 {v(t,2)}, {v(Lg,2)}, {v(Lg+2,2)}\nv_pk_add_f32 {v(t+2,2)}, {v(Lg+4,2)}, {v(Lg+6,2)}\nv_pk_add_f32 {v(t,2)}, {v(t,2)}, {v(t+2,2)}\nv_add_f32 v{t}, v{t}, v{t+1}")
        A(f"v_rcp_f32 v{t}, v{t}\nv_mul_f32 v{t}, {fl(-AS)}, v{t}")
        for j in range(8):
            hi = j & 1
            for d in range(9):
                if j == 0: A(f"v_pk_mul_f32 {v(O+2*d,2)}, {v(Vr[0]+2*d,2)}, {v(Lg,2)} op_sel_hi:[1,0]")
                else: A(f"v_pk_fma_f32 {v(O+2*d,2)}, {v(Vr[j%2]+2*d,2)}, {v(Lg+j-hi,2)}, {v(O+2*d,2)} op_sel:[0,{hi},0] op_sel_hi:[1,{hi},1]")
            if j + 2 < 8: rv(j + 2)
        for d in range(9): A(f"v_pk_mul_f32 {v(O+2*d,2)}, {v(O+2*d,2)}, {v(t,2)} op_sel_hi:[1,0]")
        for d in range(9): A(f"v_cvt_pk_bf16_f32 v{Qr+d}, v{O+2*d}, v{O+2*d+1}")
        for c in range(5):
            if c < 4: A(f"s_add_u32 s3, s64, {c}")
            else: A("s_mov_b32 s3, s65")
            A(f"s_lshr_b32 s59, s3, 1\ns_lshl_b32 s59, s59, 10\ns_and_b32 s3, s3, 1\ns_lshl_b32 s3, s3, 3\ns_add_u32 s3, s3, s59\ns_add_u32 s3, s3, {LO}")
            if c == 4: A("s_add_u32 s3, s3, s22")
            A(f"v_add_u32 v{t+1}, s3, v{vL16}")
            A(f"ds_write_b64 v{t+1}, {v(Qr+2*c,2)}" if c < 4 else f"ds_write_b32 v{t+1}, v{Qr+8}")
        A.wait(lg=0)

    def final(self):
        A = self.A; acc = self.acc; t = TMP; P = RING
        A(f"v_and_b32 v{vP}, 7, v0\ns_lshl_b32 s3, s{sM}, 3\nv_add_lshl_u32 v{vP}, v{vP}, s3, 7")
        self.poll_issue(vP, vP+1, 3)
        RX = S0; RX1 = S0 + 8; ga = S0 + 16
        A(f"s_lshl_b32 s22, s{sOWN}, 7\ns_lshl_b32 s3, s{sW}, 5\ns_add_u32 s22, s22, s3\ns_add_u32 s22, s22, s{sCL}")
        A(f"s_lshl_b32 s23, s{sOWN}, 13\ns_add_u32 s23, s23, s{sCL}\ns_add_u32 s23, s23, {X1 - 8192}")
        for u in range(4):
            A(f"v_bfe_u32 v{t}, v{vA+u}, 4, 6\nv_mul_u32_u24 v{t}, 1152, v{t}\nv_lshl_add_u32 v{ga+u}, v{vQ}, 3, v{t}")
            A(f"buffer_load_dwordx2 {v(RX+2*u,2)}, v{ga+u}, s[8:11], s22 offen")
            A(f"buffer_load_dwordx2 {v(RX1+2*u,2)}, v{vD+u}, s[12:15], s23 offen sc1")
        ex, ex1, ea = S0 + 20, S0 + 21, S0 + 22
        A(f"s_lshr_b32 s64, s{sF}, 1\ns_and_b32 s3, s{sF}, 1\ns_lshl_b32 s3, s3, 1\ns_xor_b32 s3, s3, s64\nv_lshrrev_b32 v{t}, 5, v0\nv_xor_b32 v{t}, s3, v{t}\nv_lshl_add_u32 v{t}, v{t}, 4, v{vI}")
        A(f"v_and_b32 v{t+1}, 1, v{vQ}\nv_lshlrev_b32 v{t+1}, 2, v{t+1}\nv_mul_u32_u24 v{ea}, 1152, v{t}\nv_add_u32 v{ea}, v{ea}, v{t+1}\nv_lshl_add_u32 v{t}, v{t}, 4, v{t+1}")
        A(f"s_lshl_b32 s65, s64, 5\ns_lshl_b32 s3, s{sW}, 3\ns_add_u32 s65, s65, s3\ns_add_u32 s65, s65, s{sCL}\ns_add_u32 s65, s65, 1024")
        A(f"buffer_load_dword v{ex}, v{ea}, s[8:11], s65 offen")
        A(f"s_lshl_b32 s59, s64, 1\ns_lshr_b32 s3, s{sW}, 1\ns_add_u32 s59, s59, s3\ns_lshl_b32 s59, s59, 10\ns_and_b32 s3, s{sW}, 1\ns_lshl_b32 s3, s3, 3\ns_add_u32 s59, s59, s3\ns_add_u32 s59, s59, s{sCL}\ns_add_u32 s59, s59, {X1 + 65536}")
        A(f"buffer_load_dword v{ex1}, v{t}, s[12:15], s59 offen sc1")
        self.poll_check(vP, vP+1, 3)
        self.stamp()
        A(f"s_lshl_b32 s59, s{sOWN}, 16\ns_lshl_b32 s3, s{sW}, 11\ns_add_u32 s59, s59, s3\ns_add_u32 s59, s59, s{sPT}")
        for j in range(7):
            A(f"s_add_u32 s3, s{sF}, {j+1}\ns_and_b32 s3, s3, 7\ns_lshl_b32 s3, s3, 13\ns_add_u32 s57, s3, s59")
            for tp in range(2): A(f"buffer_load_dwordx4 {v(P+8*j+4*tp,4)}, v{vL16}, s[12:15], s57 offen offset:{tp*1024} sc1")
        E = P + 56
        A(f"v_lshlrev_b32 v{t}, 13, v{vQ}\nv_lshl_add_u32 v{t}, v{vI}, 4, v{t}\ns_lshl_b32 s3, s{sF}, 10\ns_lshl_b32 s59, s{sW}, 8\ns_add_u32 s3, s3, s59\ns_add_u32 s3, s3, s{sPT}\ns_add_u32 s57, s3, {8*65536}\ns_add_u32 s59, s57, 32768")
        A(f"buffer_load_dwordx4 {v(E,4)}, v{t}, s[12:15], s57 offen sc1\nbuffer_load_dwordx4 {v(E+4,4)}, v{t}, s[12:15], s59 offen sc1")
        def unpack(dst, r): A(f"v_lshlrev_b32 v{dst}, 16, v{r}\nv_and_b32 v{dst+1}, 0xffff0000, v{r}")
        RS = S0 + 24
        for k in range(8):
            unpack(RS + 2*k, RX + k); unpack(t, RX1 + k)
            A(f"v_pk_add_f32 {v(RS+2*k,2)}, {v(RS+2*k,2)}, {v(t,2)}")
        for j in range(7):
            for k in range(8):
                tt = t + 2 * (k % 2)
                unpack(tt, P + 8*j + k)
                A(f"v_pk_add_f32 {v(acc+2*k,2)}, {v(acc+2*k,2)}, {v(tt,2)}")
        A(f"s_mov_b32 s60, {fl(-1/AS)}\ns_mov_b32 s61, s60")
        for k in range(8): A(f"v_pk_fma_f32 {v(acc+2*k,2)}, {v(acc+2*k,2)}, s[60:61], {v(RS+2*k,2)}")
        for k in range(8): A(f"v_cvt_pk_bf16_f32 v{OUT+k}, v{acc+2*k}, v{acc+2*k+1}")
        for tp in range(2):
            o = OUT + 4*tp
            A(f"v_bfe_u32 v{t}, v{vA+2*tp}, 4, 6\nv_and_b32 v{t+1}, 1, v{vQ}\nv_lshlrev_b32 v{t+1}, 4, v{t+1}\nv_xor_b32 v{t}, v{t}, v{t+1}\nv_mul_u32_u24 v{t}, 1152, v{t}\nv_lshrrev_b32 v{t+1}, 1, v{vQ}\nv_lshl_add_u32 v{t}, v{t+1}, 4, v{t}")
            A(f"v_permlane16_swap_b32 v{o}, v{o+2}\nv_permlane16_swap_b32 v{o+1}, v{o+3}")
            A(f"buffer_store_dwordx4 {v(o,4)}, v{t}, s[16:19], s22 offen")
        a = RS
        for k in range(4):
            unpack(a + 2*k, E + k); unpack(t, E + 4 + k)
            A(f"v_pk_add_f32 {v(a+2*k,2)}, {v(a+2*k,2)}, {v(t,2)}")
        for k in range(4): A(f"v_permlane32_swap_b32 v{a+k}, v{a+4+k}")
        for k in (0, 2): A(f"v_pk_add_f32 {v(a+k,2)}, {v(a+k,2)}, {v(a+4+k,2)}")
        for k in range(2): A(f"v_permlane16_swap_b32 v{a+k}, v{a+2+k}")
        A(f"v_pk_add_f32 {v(a,2)}, {v(a,2)}, {v(a+2,2)}")
        unpack(t, ex); unpack(t+2, ex1)
        A(f"v_pk_add_f32 {v(t,2)}, {v(t,2)}, {v(t+2,2)}\nv_pk_fma_f32 {v(t,2)}, {v(a,2)}, s[60:61], {v(t,2)}\nv_cvt_pk_bf16_f32 v{t}, v{t}, v{t+1}")
        A(f"buffer_store_dword v{t}, v{ea}, s[16:19], s65 offen")

vI, vQ, vL16, vTID, ONE, vFLO, vSHR, vGS = 1, 2, 3, 4, 5, 6, 7, 8
vG = 9
vP = 11
vA = 14; vA2 = 18; vD = 22
TMP = 26
OUT = 32
ACC = 40
SACC = 72
XB = 76
R2 = 76; KS = 80
RING = 88
S0 = 184
SHF = 216; XN = 228
vH = 84
sW, sF, sM, sE, sSH, sOWN, sP4, sCL, sPT, sF9, sPB, sPS, sKV = 24, 25, 26, 27, 28, 29, 30, 31, 32, 33, 34, 35, 36
sB3 = 38; sK4 = 47

def build_file(stamps=False, c=4):
    DEP = 23
    m = Main(c=c, stamps=stamps, DEP=DEP)
    pk = "pack_kernel"; mn = "main_kernel"
    txt = header([f"; @launch kernel={pk} grid=(402,1,1) block=(256,1,1) lds=36864", f"; @launch kernel={mn} grid=(256,1,1) block=(256,1,1) lds={LDS_END}"])
    txt += gen_pack(pk) + m.gen(mn)
    txt += '.section .rodata,"a"\n' + kdesc(pk, 72, 64) + kdesc(mn, 512, 102, 256)
    return txt, m

if __name__ == "__main__":
    t, m = build_file(stamps="stamps" in sys.argv)
    open(sys.argv[1], "w").write(t)
    print(m.A.stats, "nops", m.A.nops, "stamps", m.nst, "WS_END", hex(WS_END))
```

```python
import sys, struct, math
sys.path.insert(0, "gen")
from asmlib import *

def fl(x): return "0x%08x" % struct.unpack("<I", struct.pack("<f", x))[0]
C1 = 2.0 * math.sqrt(2.0 / math.pi) * math.log2(math.e)
C2 = C1 * 0.044715
AS = C2 ** (1.0 / 3.0)
KG = C1 / AS
EPS = 1e-5
SCL = 18 ** -0.5 * math.log2(math.e)

FL = 0
STAMP = 0x20000
PKE = 0x100000; PKE_F = 5 * 73728 + 3 * 18432
PK3 = PKE + 8 * PKE_F; PK3_F = 663552
PK4 = PK3 + 8 * PK3_F; PK4_F = 9 * 4 * 21 * 1024
H1 = PK4 + 8 * PK4_F
X1 = H1 + 32 * 73728
KVH = X1 + 32 * 73728
PART = KVH + 256 * 8192
WS_END = PART + 32 * 9 * 65536
OOB = 0x80000000
LA = 0; LSH0 = 73728; LSH1 = 92160; LO = LSH1; LK = 110592; LQ = 122112; LV = 131328; LR2 = 154368; LDS_END = 154624
MH, MK, MV, MQ, MX = 0, 1, 2, 3, 4

def srd(A, r, lo, size):
    A(f"s_mov_b32 s{r}, s{lo}\ns_mov_b32 s{r+1}, s{lo+1}\ns_mov_b32 s{r+2}, {size}\ns_mov_b32 s{r+3}, 0x20000")

def gen_pack(name):
    A = Asm()
    A("s_cmp_ge_u32 s2, 402\ns_cbranch_scc0 P_go\ns_endpgm\nP_go:")
    A("s_load_dwordx4 s[4:7], s[0:1], 8")
    A("s_load_dwordx8 s[8:15], s[0:1], 32")
    A("s_load_dwordx2 s[16:17], s[0:1], 80")
    A("v_lshrrev_b32 v1, 6, v0\nv_readfirstlane_b32 s18, v1\nv_mov_b32 v30, v0\nv_and_b32 v0, 63, v0")
    A.wait(lg=0)
    srd(A, 24, 16, WS_END)
    A("s_cmp_ge_u32 s2, 128\ns_cbranch_scc1 P_nf")
    A("v_lshlrev_b32 v1, 2, v30\ns_lshl_b32 s3, s2, 10\nv_mov_b32 v2, 0\nbuffer_store_dword v2, v1, s[24:27], s3 offen\nP_nf:")
    A.vm = []
    A("s_mov_b32 s23, 0x20000\ns_mov_b32 s30, 32\ns_mov_b32 s33, 0\ns_mov_b32 s34, 0\ns_mov_b32 s35, 0\ns_mov_b32 s36, 0\ns_mov_b32 s37, 0")
    def div18(dst_q, dst_r, src):
        A(f"s_mul_i32 s{dst_q}, s{src}, 3641\ns_lshr_b32 s{dst_q}, s{dst_q}, 16\ns_mul_i32 s{dst_r}, s{dst_q}, 18\ns_sub_u32 s{dst_r}, s{src}, s{dst_r}")
    A("s_cmp_ge_u32 s2, 144\ns_cbranch_scc1 P_n3")
    div18(40, 41, 2)
    A(f"s_mov_b32 s20, s12\ns_mov_b32 s21, s13\ns_mov_b32 s22, 5308416\ns_mov_b32 s29, 9216")
    A(f"s_mul_i32 s28, s41, {32*9216}\ns_mul_i32 s3, s40, 1152\ns_add_u32 s28, s28, s3")
    A(f"s_mul_i32 s31, s40, {PK3_F}\ns_lshl_b32 s3, s41, 10\ns_add_u32 s31, s31, s3\ns_mul_i32 s3, s18, 18432\ns_add_u32 s31, s31, s3\ns_add_u32 s31, s31, {PK3}\ns_mov_b32 s32, 73728")
    A("s_branch P_dec\nP_n3:")
    A("s_cmp_ge_u32 s2, 288\ns_cbranch_scc1 P_n4")
    A("s_sub_u32 s42, s2, 144"); div18(40, 41, 42)
    A(f"s_mov_b32 s20, s14\ns_mov_b32 s21, s15\ns_mov_b32 s22, 5308416\ns_mov_b32 s29, 1152")
    A(f"s_mul_i32 s28, s42, {32*1152}\ns_add_u32 s41, s41, 3")
    A("s_branch P_d4\nP_n4:")
    A("s_cmp_ge_u32 s2, 312\ns_cbranch_scc1 P_e")
    A("s_sub_u32 s42, s2, 288\ns_mul_i32 s40, s42, 21846\ns_lshr_b32 s40, s40, 16\ns_mul_i32 s41, s40, 3\ns_sub_u32 s41, s42, s41")
    A(f"s_mov_b32 s20, s6\ns_mov_b32 s21, s7\ns_mov_b32 s22, 663552\ns_mov_b32 s29, 1152")
    A(f"s_mul_i32 s28, s40, {72*1152}\ns_mul_i32 s3, s41, {32*1152}\ns_add_u32 s28, s28, s3")
    A("s_cmp_eq_u32 s41, 2\ns_cselect_b32 s30, 8, 32")
    A("P_d4:")
    A(f"s_mul_i32 s31, s40, {PK4_F}\ns_lshl_b32 s3, s41, 10\ns_add_u32 s31, s31, s3\ns_mul_i32 s3, s18, 21504\ns_add_u32 s31, s31, s3\ns_add_u32 s31, s31, {PK4}\ns_mov_b32 s32, 86016")
    A("s_branch P_dec\nP_e:")
    A("s_sub_u32 s42, s2, 312"); div18(40, 41, 42)
    A("s_mov_b32 s33, 1")
    A("s_mov_b32 s20, s4\ns_mov_b32 s21, s5\ns_mov_b32 s22, 1990656\ns_mov_b32 s29, 3456")
    A(f"s_cmp_eq_u32 s40, {MH}\ns_cselect_b32 s20, s8, s20\ns_cselect_b32 s21, s9, s21\ns_cselect_b32 s22, 663552, s22\ns_cselect_b32 s29, 1152, s29")
    A(f"s_cmp_eq_u32 s40, {MX}\ns_cselect_b32 s20, s10, s20\ns_cselect_b32 s21, s11, s21\ns_cselect_b32 s22, 663552, s22\ns_cselect_b32 s29, 1152, s29\ns_cselect_b32 s37, 128, 0\ns_cselect_b32 s36, {2*18432}, 0")
    A("s_mul_i32 s28, s41, s29\ns_lshl_b32 s28, s28, 5")
    A(f"s_mov_b32 s35, 128\ns_cmp_eq_u32 s40, {MK}\ns_cselect_b32 s3, 1152, 0\ns_cselect_b32 s34, 16, 0\ns_cselect_b32 s35, 0, s35\ns_cselect_b32 s36, 128, s36\ns_add_u32 s28, s28, s3")
    A(f"s_cmp_eq_u32 s40, {MV}\ns_cselect_b32 s3, 2304, 0\ns_cselect_b32 s36, {18432+128}, s36\ns_add_u32 s28, s28, s3")
    A(f"s_cmp_eq_u32 s40, {MQ}\ns_cselect_b32 s36, 18432, s36")
    A(f"s_lshl_b32 s38, s41, 10\ns_add_u32 s38, s38, {PKE}")
    A(f"s_mul_i32 s31, s40, 73728\ns_mul_i32 s3, s18, 18432\ns_add_u32 s31, s31, s3\ns_add_u32 s31, s31, s38\ns_mov_b32 s32, {PKE_F}")
    A(f"s_add_u32 s36, s36, s38\ns_add_u32 s36, s36, {5*73728}")
    A("P_dec:")
    A.nop(2)
    A("s_mul_i32 s39, s18, 9216\ns_lshl_b32 s43, s18, 3\ns_and_b32 s44, s18, 1\ns_lshl_b32 s44, s44, 2")
    for j in range(9):
        A(f"v_add_u32 v1, {64*j}, v0\nv_mul_u32_u24 v2, 911, v1\nv_lshrrev_b32 v2, 16, v2")
        A("v_mul_u32_u24 v3, 72, v2\nv_sub_u32 v3, v1, v3")
        A("v_and_b32 v4, 2, v2\nv_or_b32 v4, s44, v4\nv_xor_b32 v3, v3, v4")
        A("v_add_u32 v2, s43, v2\nv_cmp_gt_u32 vcc, s30, v2\nv_mul_lo_u32 v2, v2, s29\nv_lshl_add_u32 v2, v3, 4, v2")
        A(f"v_mov_b32 v4, {OOB}\nv_cndmask_b32 v2, v4, v2, vcc")
        A(f"s_add_u32 m0, s39, {1024*j}\ns_nop 0\nbuffer_load_dwordx4 v2, s[20:23], s28 offen lds")
    A("v_lshrrev_b32 v5, 4, v0\nv_bfe_u32 v6, v0, 2, 2\nv_lshl_add_u32 v7, v5, 3, v6\nv_mul_u32_u24 v7, 1152, v7")
    A("v_lshrrev_b32 v6, 1, v6\nv_and_b32 v8, 1, v5\nv_lshl_or_b32 v6, v8, 1, v6\nv_lshlrev_b32 v6, 5, v6")
    A("v_and_b32 v8, 3, v0\nv_lshlrev_b32 v9, 3, v8\ns_lshl_b32 s3, s18, 5\ns_add_u32 s3, s3, s34\nv_add_u32 v9, s3, v9")
    A("s_lshl_b32 s45, s33, 4\ns_add_u32 s45, s45, 128")
    A("v_lshlrev_b32 v10, 4, v0")
    A("v_lshrrev_b32 v11, 1, v8\ns_lshl_b32 s3, s18, 1\nv_add_u32 v11, s3, v11\nv_mul_u32_u24 v11, 144, v11\nv_and_b32 v12, 1, v8\nv_lshl_add_u32 v11, v12, 3, v11\nv_add_u32 v11, s35, v11")
    A(f"v_bfe_u32 v12, v0, 3, 1\nv_add_u32 v12, s3, v12\ns_mov_b32 s46, {PKE_F}\nv_mul_lo_u32 v12, v12, s46\nv_lshl_add_u32 v12, v5, 8, v12\nv_and_b32 v13, 7, v0\nv_lshl_add_u32 v12, v13, 4, v12")
    A("s_lshl_b32 s3, s32, 3\ns_add_u32 s3, s3, s31\ns_cmp_eq_u32 s33, 1\ns_cselect_b32 s36, s36, s3\ns_cselect_b64 vcc, -1, 0")
    A("v_add_u32 v13, 1024, v9\nv_cndmask_b32 v11, v13, v11, vcc\nv_cndmask_b32 v12, v10, v12, vcc")
    A.wait(vm=0); A("s_barrier")
    for j in range(9):
        src = 9 if j < 8 else 11
        A(f"v_xad_u32 v14, v{src}, v6, v7")
        A(f"ds_read_b64_tr_b16 {v(32+4*j,2)}, v14\nds_read_b64_tr_b16 {v(34+4*j,2)}, v14 offset:4608")
        if j < 7: A("v_add_u32 v9, s45, v9")
    for j in range(8):
        A(f"buffer_store_dwordx4 {v(32+4*j,4)}, v10, s[24:27], s31 offen")
        A("s_add_u32 s31, s31, s32")
    A("buffer_store_dwordx4 v[64:67], v12, s[24:27], s36 offen")
    A("s_add_u32 s36, s36, s37\nbuffer_store_dwordx4 v[64:67], v12, s[24:27], s36 offen")
    A("s_endpgm")
    return kstart(name) + A.text() + "\n"

class Main:
    def __init__(self, c=4, stamps=False, DEP=23):
        self.A = Asm(); self.c = c; self.stamps = stamps; self.DEP = DEP; self.nst = 0; self.nlab = 0
    def stamp(self):
        if self.stamps:
            self.A(f"s_memrealtime {s(66 + 2*self.nst, 2)}"); self.nst += 1
    def lab(self, p):
        self.nlab += 1; return f"L_{p}{self.nlab}"

    def poll_issue(self, vaddr, vdst, typ):
        self.A(f"s_mov_b32 s57, {FL + typ*32768}")
        return self.A(f"buffer_load_dword v{vdst}, v{vaddr}, s[12:15], s57 offen sc1")
    def poll_check(self, vaddr, vdst, typ):
        A = self.A; ok = self.lab("ok"); lp = self.lab("sp")
        A(f"v_cmp_ne_u32 vcc, 1, v{vdst}\ns_mov_b32 s58, 0\ns_mov_b32 s57, {FL + typ*32768}")
        A(f"s_cbranch_vccz {ok}")
        sn = A.snap()
        A(f"{lp}:\nbuffer_load_dword v{vdst}, v{vaddr}, s[12:15], s57 offen sc1\ns_add_u32 s58, s58, 1\ns_cmp_gt_u32 s58, 200000\ns_cbranch_scc1 {ok}")
        A(f"v_cmp_ne_u32 vcc, 1, v{vdst}\ns_cbranch_vccnz {lp}")
        A(f"{ok}:"); A.restore(sn)
    def flag_set(self, typ):
        A = self.A; sk = self.lab("fs")
        A.wait(lg=0)
        A("s_barrier")
        A(f"s_mov_b32 s57, {FL + typ*32768}")
        A(f"buffer_store_dword v{ONE}, v{vFLO}, s[12:15], s57 offen sc1")

    def gen(self, name):
        A = self.A; c = self.c; per = 8 // c; lg = {1:0,2:1,4:2,8:3}
        A("s_cmp_ge_u32 s2, 256\ns_cbranch_scc0 M_go\ns_endpgm\nM_go:")
        self.stamp()
        A("s_load_dwordx2 s[4:5], s[0:1], 0\ns_load_dwordx2 s[6:7], s[0:1], 64\ns_load_dwordx2 s[20:21], s[0:1], 80")
        A(f"v_lshrrev_b32 v1, 6, v0\nv_mov_b32 v{vTID}, v0\nv_readfirstlane_b32 s{sW}, v1\nv_and_b32 v0, 63, v0")
        if self.pf:
            A(f"s_getpc_b64 s[22:23]\nv_lshlrev_b32 v1, 7, v{vTID}\nv_min_u32 v2, {self.pf - 32768}, v1\nv_add_u32 v2, 32768, v2")
            A(f"global_load_dword v{OUT}, v1, s[22:23]\nglobal_load_dword v{OUT+1}, v2, s[22:23]")
        A("s_and_b32 s22, s2, 7\ns_lshr_b32 s23, s2, 3")
        A(f"s_and_b32 s{sF}, s22, {c-1}\ns_lshl_b32 s{sF}, s{sF}, {lg[per]}\ns_and_b32 s3, s23, {per-1}\ns_add_u32 s{sF}, s{sF}, s3")
        A(f"s_lshr_b32 s{sM}, s22, {lg[c]}\ns_mul_i32 s{sM}, s{sM}, {32//per}\ns_lshr_b32 s3, s23, {lg[per]}\ns_add_u32 s{sM}, s{sM}, s3")
        t0, t1, t2, t3 = TMP, TMP+1, TMP+2, TMP+3
        A(f"v_and_b32 v{vI}, 15, v0\nv_lshrrev_b32 v{vQ}, 4, v0\nv_lshlrev_b32 v{vL16}, 4, v0")
        A(f"s_lshl_b32 s3, s{sM}, 2\ns_add_u32 s3, s3, s{sW}\ns_lshl_b32 s3, s3, 4\nv_add_u32 v{t0}, s3, v{vI}\nv_mul_u32_u24 v{t0}, 1152, v{t0}\nv_lshl_add_u32 v{t0}, v{vQ}, 4, v{t0}")
        A.wait(lg=0)
        srd(A, 8, 4, 2359296); srd(A, 12, 20, WS_END); srd(A, 16, 6, 2359296)
        for ks in range(18): A(f"buffer_load_dwordx4 {v(S0+4*ks,4)}, v{t0}, s[8:11], 0 offen offset:{64*ks}")
        A(f"s_mul_i32 s{sE}, s{sF}, {PKE_F}\ns_add_u32 s{sE}, s{sE}, {PKE}\ns_add_u32 s{sSH}, s{sE}, {5*73728}\ns_mul_i32 s3, s{sW}, 18432\ns_add_u32 s{sE}, s{sE}, s3")
        self.build_stream()
        for i in range(18): self.load(i)
        self.nl = 18
        self.dma_shared(0, LSH0); idsh = self.dma_shared(1, LSH1)
        while self.nl < self.DEP: self.load(self.nl); self.nl += 1
        A(f"s_mul_i32 s22, s{sM}, 57\ns_lshr_b32 s22, s22, 9\ns_mul_i32 s22, s22, 9\ns_sub_u32 s22, s{sM}, s22")
        A(f"s_mul_i32 s23, s{sF}, {PK3_F}\ns_add_u32 s23, s23, s3\ns_add_u32 s23, s23, {PK3}")
        for p in range(9):
            A(f"s_mul_i32 {s(sB3+p)}, s22, 73728\ns_add_u32 {s(sB3+p)}, {s(sB3+p)}, s23\ns_lshl_b32 {s(sK4+p)}, s22, 11\ns_add_u32 s22, s22, 1\ns_cmp_eq_u32 s22, 9\ns_cselect_b32 s22, 0, s22")
        A(f"s_add_u32 s{sOWN}, s{sF}, s{sM}\ns_and_b32 s{sOWN}, s{sOWN}, 7")
        A(f"s_mul_i32 s{sP4}, s{sF}, {PK4_F}\ns_mul_i32 s3, s{sW}, 21504\ns_add_u32 s{sP4}, s{sP4}, s3\ns_add_u32 s{sP4}, s{sP4}, {PK4}")
        A(f"s_mul_i32 s{sCL}, s{sM}, 73728")
        A(f"s_mul_i32 s{sPT}, s{sM}, {9*65536}\ns_add_u32 s{sPT}, s{sPT}, {PART}")
        A(f"s_lshl_b32 s3, s{sW}, 8\nv_lshlrev_b32 v{t0}, 4, v{vI}\nv_add_u32 v{t0}, s3, v{t0}")
        A(f"v_lshl_add_u32 v{vA}, v{vQ}, 10, v{t0}")
        A(f"v_lshrrev_b32 v{t1}, 1, v{vQ}\nv_and_b32 v{t2}, 1, v{vQ}\ns_lshl_b32 s3, s{sW}, 11\nv_lshl_add_u32 v{t1}, v{t1}, 10, s3")
        A(f"v_lshl_add_u32 v{t3}, v{t2}, 3, v{t0}\nv_add_u32 v{vD}, v{t1}, v{t3}")
        A(f"s_mul_i32 s{sF9}, s{sF}, 9216\ns_add_u32 s3, s{sF9}, 8192\nv_add_u32 v{vGS}, s3, v{t3}")
        A(f"v_lshlrev_b32 v{t2}, 8, v{t2}\nv_xor_b32 v{t2}, v{t2}, v{t0}\nv_add3_u32 v{vG}, v{t1}, v{t2}, s{sF9}\nv_xor_b32 v{vG+1}, 512, v{vG}")
        for u in range(1, 4): A(f"v_xor_b32 v{vA+u}, {u*256}, v{vA}\nv_xor_b32 v{vD+u}, {u*256}, v{vD}")
        for u in range(4): A(f"v_add_u32 v{vA2+u}, 36864, v{vA+u}")
        A(f"v_mov_b32 v{ONE}, 1\nv_add_u32 v{vSHR}, {LSH0}, v{vL16}")
        A(f"s_lshl_b32 s3, s{sM}, 3\ns_add_u32 s3, s3, s{sF}\ns_lshl_b32 s3, s3, 7\nv_mov_b32 v{t0}, s3\nv_mov_b32 v{t1}, {OOB}\nv_cmp_eq_u32 vcc, 0, v{vTID}\nv_cndmask_b32 v{vFLO}, v{t1}, v{t0}, vcc")
        self.stamp()
        self.layernorm(first=True)
        A.wait_id(idsh); A.wait(lg=0); A("s_barrier")
        self.stamp()
        for u in range(4):
            A(f"v_bfe_u32 v{t0}, v{vA+u}, 2, 8\nv_add_u32 v{t0}, {LR2}, v{t0}\nds_read_b32 v{R2+u}, v{t0}")
            A(f"v_add_u32 v{t0}, s{sF9}, v{vD+u}\nds_read_b64 {R('a',XN+2*u,2)}, v{t0}")
        A(f"ds_read_b64 {R('a',XN+8,2)}, v{vGS}")
        self.panel(jit="A3", shared=LSH0)
        self.stamp()
        self.epi_h()
        self.stamp()
        st = {}
        def pub_h():
            A.wait_id(self.last_store); self.flag_set(0)
            st["shx"] = self.dma_shared(2, LSH0)
        self.panel(hooks={8: pub_h}, fill=self.epi_k_shared())
        def poll1_issue():
            A(f"s_and_b32 s3, s{sW}, 1\ns_lshl_b32 s3, s3, 1\ns_add_u32 s3, s3, s{sM}\ns_sub_u32 s3, s3, 1\ns_cmp_lt_u32 s3, 32\ns_cselect_b32 s3, s3, s{sM}")
            A(f"v_mov_b32 v{vP}, s{sM}\nv_mov_b32 v{vP+1}, s3\nv_and_b32 v{vP+2}, 2, v0\nv_cmp_eq_u32 vcc, 0, v{vP+2}\nv_cndmask_b32 v{vP}, v{vP+1}, v{vP}, vcc")
            A(f"v_and_b32 v{vP+1}, 1, v0\nv_lshl_add_u32 v{vP}, v{vP}, 3, v{vP+1}\ns_lshl_b32 s3, s{sW}, 1\nv_add_lshl_u32 v{vP}, v{vP}, s3, 7")
            self.poll_issue(vP, vP+1, 0)
        self.panel(shared=LSH1, fill=self.epi_kq(LK, 640, 2, 16), hooks={14: poll1_issue})
        def gather_check():
            self.poll_check(vP, vP+1, 0)
            A(f"s_lshr_b32 s3, s{sW}, 1\ns_add_u32 s3, s3, 1\ns_sub_u32 s22, 0, s3\ns_bitcmp1_b32 s{sW}, 0\ns_cselect_b32 s3, s3, s22\ns_lshl_b32 s22, s{sM}, 6\ns_add_u32 s3, s3, s22")
            A(f"v_add_u32 v{vP}, s3, v0\nv_cmp_gt_u32 vcc, 2048, v{vP}\nv_lshrrev_b32 v{vP+1}, 6, v{vP}\nv_mul_u32_u24 v{vP+1}, 73728, v{vP+1}\nv_and_b32 v{vP}, 63, v{vP}\nv_lshl_add_u32 v{vP}, v{vP}, 4, v{vP+1}")
            A(f"v_mov_b32 v{vP+1}, {OOB}\nv_cndmask_b32 v{vP}, v{vP+1}, v{vP}, vcc\ns_mul_i32 s59, s{sW}, 18432")
        def gather_dma(j0):
            def f():
                A(f"s_add_u32 m0, s59, {j0*1024}\ns_add_u32 s57, s59, {H1 + j0*1024}")
                for j in range(3): st["g"] = A(f"buffer_load_dwordx4 v{vP}, s[12:15], s57 offen offset:{j*1024} sc1 lds")
            return f
        hk = {3: gather_check}
        for j in range(6): hk[4 + j] = gather_dma(3 * j)
        self.panel(fill=self.epi_v(), hooks=hk)
        for sl in self.epi_kq(LQ, 512, 0, 0):
            for x in sl: A(x)
        self.stamp()
        A.wait_id(st["g"]); A.wait(lg=0); A("s_barrier")
        self.stamp()
        def halo_pub():
            h0, h1 = vH, vH+1
            A(f"v_lshrrev_b32 v{t0}, 4, v{vTID}\nv_mul_u32_u24 v{t0}, 1280, v{t0}\nv_lshl_add_u32 v{t0}, v{vI}, 4, v{t0}\nv_add_u32 v{h0}, {LV}, v{t0}")
            A(f"v_subrev_u32 v{t1}, 32, v{vTID}\nv_lshrrev_b32 v{t2}, 3, v{t1}\nv_mul_u32_u24 v{t2}, 640, v{t2}\nv_and_b32 v{t1}, 7, v{t1}\nv_lshl_add_u32 v{t2}, v{t1}, 4, v{t2}\nv_add_u32 v{t2}, {LK}, v{t2}")
            A(f"v_add_u32 v{t1}, {16*1280}, v{h0}\nv_cmp_gt_u32 vcc, 32, v{vTID}\nv_cndmask_b32 v{h1}, v{t2}, v{t1}, vcc")
            A(f"v_mov_b32 v{t1}, 512\nv_mov_b32 v{t2}, 1024\nv_cndmask_b32 v{t1}, v{t1}, v{t2}, vcc")
            A(f"v_mov_b32 v{t2}, {LR2}\nv_cmp_gt_u32 vcc, 176, v{vTID}\nv_cndmask_b32 v{h1}, v{t2}, v{h1}, vcc\nv_cndmask_b32 v{t1}, 0, v{t1}, vcc\nv_add_u32 v{t1}, v{t1}, v{h1}")
            A(f"ds_read_b128 {v(OUT,4)}, v{h0} offset:1024\nds_read_b128 {v(OUT+4,4)}, v{t1}")
            A(f"s_lshl_b32 s3, s{sM}, 3\ns_add_u32 s3, s3, s{sF}\ns_lshl_b32 s3, s3, 13\ns_add_u32 s{sKV}, s3, {KVH}\nv_lshlrev_b32 v{vH+2}, 4, v{vTID}")
        def halo_pub2():
            A(f"s_add_u32 s57, s{sKV}, 4096")
            A(f"buffer_store_dwordx4 {v(OUT,4)}, v{vH+2}, s[12:15], s{sKV} offen sc1")
            A(f"buffer_store_dwordx4 {v(OUT+4,4)}, v{vH+2}, s[12:15], s57 offen sc1")
            A(f"s_min_u32 s3, s{sW}, 2\ns_lshl_b32 s3, s3, 10\ns_add_u32 s3, s3, {LO + 9*1024}\nv_add_u32 v{t0}, s3, v{vL16}")
            A(f"v_mov_b32 v{t2}, 0\nv_mov_b32 v{t3}, 0\nds_write_b64 v{t0}, {v(t2,2)}\nds_write_b64 v{t0}, {v(t2,2)} offset:8")
        self.panel(jit="A4", shared=LSH0, hooks={2: halo_pub, 5: halo_pub2}, fill=self.pre_x())
        self.stamp()
        self.epi_x()
        A.wait_id(self.last_store); self.flag_set(2)
        self.stamp()
        A(f"s_sub_u32 s3, s{sM}, 1\ns_max_i32 s3, s3, 0\ns_lshl_b32 s3, s3, 3\ns_add_u32 s3, s3, s{sF}\ns_lshl_b32 s3, s3, 7\nv_mov_b32 v{vP}, s3")
        A(f"v_and_b32 v{vP+1}, 7, v0\ns_lshl_b32 s3, s{sM}, 3\nv_add_lshl_u32 v{vP+1}, v{vP+1}, s3, 7\nv_cmp_gt_u32 vcc, 32, v0\nv_cndmask_b32 v{vP}, v{vP}, v{vP+1}, vcc")
        self.poll_issue(vP, vP+1, 2); self.poll_check(vP, vP+1, 2)
        self.stamp()
        A(f"s_cmp_eq_u32 s{sM}, 0\ns_cselect_b32 s3, {OOB}, 0\nv_add_u32 v{vH+2}, s3, v{vH+2}\ns_sub_u32 s{sKV}, s{sKV}, 65536\ns_add_u32 s57, s{sKV}, 4096")
        A(f"buffer_load_dwordx4 {v(OUT,4)}, v{vH+2}, s[12:15], s{sKV} offen sc1\nbuffer_load_dwordx4 {v(OUT+4,4)}, v{vH+2}, s[12:15], s57 offen sc1")
        A(f"ds_write_b128 v{vH}, {v(OUT,4)}\nds_write_b128 v{vH+1}, {v(OUT+4,4)}")
        A.wait(lg=0); A("s_barrier")
        self.attention()
        self.stamp()
        for ks in range(18):
            A(f"s_add_u32 s57, s{sCL}, {X1 + ks*4096}\nbuffer_load_dwordx4 {v(S0+4*ks,4)}, v{vA}, s[12:15], s57 offen sc1")
        self.layernorm(first=False)
        A.wait(lg=0); A("s_barrier")
        self.stamp()
        fill = None
        for p in range(9):
            hk = {}
            if p == 1: hk[1] = lambda: A("s_barrier")
            self.panel(jit="A3" if p == 0 else None, fill=fill, hooks=hk)
            fill = self.epi_g3(p)
        for sl in fill:
            for x in sl: A(x)
        A.wait(lg=0); A("s_barrier")
        self.stamp()
        fill = None
        for p in range(9):
            hk = {}
            if p == 8:
                def pub_p():
                    A.wait_id(self.last_store); self.flag_set(3)
                hk[16] = pub_p
            self.panel(jit="H4" if p == 0 else None, fill=fill, hooks=hk, nk=21)
            if p < 8: fill = self.epi_g4(p)
        self.stamp()
        self.final()
        self.stamp()
        if self.stamps:
            A.wait(vm=0, lg=0)
            A(f"s_memrealtime {s(66 + 2*self.nst, 2)}"); self.nst += 1
            A(f"s_lshl_b32 s3, s2, 2\ns_add_u32 s3, s3, s{sW}\ns_lshl_b32 s3, s3, 7\ns_add_u32 s3, s3, {STAMP}\nv_mov_b32 v1, 0")
            for i in range(self.nst):
                A(f"v_mov_b32 v2, {s(66+2*i)}\nbuffer_store_dword v2, v1, s[12:15], s3 offen offset:{4*i}")
        A("s_endpgm")
        return kstart(name) + A.text() + "\n"

    def build_stream(self):
        S = []
        for mat in (MH, MK, MV, MQ, MX):
            for ks in range(18): S.append((f"s_add_u32 s56, s{sE}, {mat*73728 + ks*1024}" if ks % 4 == 0 else None, (ks % 4) * 1024))
        for p in range(9):
            for ks in range(18): S.append((f"s_add_u32 s56, {s(sB3+p)}, {ks*1024}" if ks % 4 == 0 else None, (ks % 4) * 1024))
        for p in range(9):
            for ks in range(21):
                if ks == 0:
                    if p == 0: pre = f"s_add_u32 s{sPB}, s{sP4}, {8*86016}\ns_mov_b32 s56, s{sPB}"
                    else: pre = f"s_add_u32 s56, s{sOWN}, {p}\ns_and_b32 s56, s56, 7\ns_mul_i32 s56, s56, 86016\ns_add_u32 s56, s56, s{sP4}\ns_mov_b32 s{sPB}, s56"
                    S.append((pre, 0))
                elif ks < 3: S.append((None, ks * 1024))
                elif (ks - 3) % 2 == 0:
                    pre = f"s_add_u32 s56, s{sPB}, {s(sK4 + (ks-3)//2)}"
                    if ks == 3: pre = f"s_add_u32 s{sPB}, s{sPB}, 3072\n" + pre
                    S.append((pre, 0))
                else: S.append((None, 1024))
        self.S = S; self.cur = 0; self.npanel = 0
    def wreg(self, i): return RING + 4 * (i % (self.DEP + 1))
    def load(self, i):
        if i >= len(self.S): return
        pre, off = self.S[i]
        if pre: self.A(pre)
        self.A(f"buffer_load_dwordx4 {v(self.wreg(i),4)}, v{vL16}, s[12:15], s56 offen offset:{off}")
    def dma_shared(self, idx, dst):
        A = self.A
        A(f"s_mul_i32 s59, s{sW}, 5\ns_min_u32 s59, s59, 13\ns_lshl_b32 s59, s59, 10\ns_add_u32 m0, s59, {dst}\ns_add_u32 s59, s59, s{sSH}\ns_add_u32 s59, s59, {idx*18432}")
        for j in range(4): A(f"buffer_load_dwordx4 v{vL16}, s[12:15], s59 offen offset:{j*1024} lds")
        A("s_add_u32 m0, m0, 4096\ns_add_u32 s59, s59, 4096")
        return A(f"buffer_load_dwordx4 v{vL16}, s[12:15], s59 offen lds")

    def breg(self, nk, ks, u):
        if nk == 21:
            if ks < 3:
                j = ks * 4 + u
                return R("a", 216 + 4 * j, 4) if j < 10 else v(XB + 4 * (j - 10), 4)
            ks -= 3
        return v(S0 + 4 * ks, 4) if u == 0 else R("a", (ks * 3 + u - 1) * 4, 4)
    def bread(self, jit, nk, ks):
        A = self.A
        for u in range(0 if jit[1] == "4" else 1, 4):
            if nk == 21 and ks < 3: base, off = vA2 + u, LO - 36864 + ks * 4096
            else:
                off = (ks - (3 if nk == 21 else 0)) * 4096; base = vA + u
                if off >= 36864: off -= 36864; base = vA2 + u
            A(f"ds_read_b128 {self.breg(nk, ks, u)}, v{base} offset:{off}")
    def panel(self, jit=None, shared=None, fill=None, hooks={}, nk=18):
        A = self.A; acc = ACC + 16 * (self.npanel % 2); self.npanel += 1; self.acc = acc
        fill = list(fill) if fill else []
        LAH = 2; skip = 3
        def pre(ks):
            if ks >= nk: return
            if jit: self.bread(jit, nk, ks)
            if shared is not None: A(f"ds_read_b128 {R('a', SHF + 4*(ks % 3), 4)}, v{vSHR} offset:{shared - LSH0 + ks*1024}")
        for k in range(LAH): pre(k)
        for ks in range(nk):
            i = self.cur; self.cur += 1
            for u in range(4):
                d = v(acc + 4*u, 4)
                A(f"v_mfma_f32_16x16x32_bf16 {d}, {v(self.wreg(i),4)}, {self.breg(nk, ks, u)}, {d if ks else 0}")
                if u == 0: self.load(self.nl); self.nl += 1
                if u == 1: pre(ks + LAH)
                if u == 2 and ks in hooks: hooks[ks]()
                if skip: skip -= 1
                elif fill:
                    for x in fill.pop(0): self.emit(x)
            if shared is not None:
                d = v(SACC, 4)
                A(f"v_mfma_f32_16x16x32_bf16 {d}, {R('a', SHF + 4*(ks % 3), 4)}, {self.breg(nk, ks, 0)}, {d if ks else 0}")
        for sl in fill:
            for x in sl: self.emit(x)
    def emit(self, x):
        r = self.A(x)
        if "buffer_store" in x: self.last_store = r

    def layernorm(self, first):
        A = self.A; a = ACC
        A("s_mov_b32 s3, 0x3f803f80")
        for j in range(72):
            k = j % 2
            A(f"v_dot2_f32_bf16 v{a+k}, v{S0+j}, s3, {'v%d' % (a+k) if j > 1 else 0}")
            A(f"v_dot2_f32_bf16 v{a+2+k}, v{S0+j}, v{S0+j}, {'v%d' % (a+2+k) if j > 1 else 0}")
        A(f"v_add_f32 v{a}, v{a}, v{a+1}\nv_add_f32 v{a+2}, v{a+2}, v{a+3}")
        for op in ("v_permlane32_swap_b32", "v_permlane16_swap_b32"):
            A(f"v_mov_b32 v{a+1}, v{a}\nv_mov_b32 v{a+3}, v{a+2}\n{op} v{a}, v{a+1}\n{op} v{a+2}, v{a+3}")
            A(f"v_add_f32 v{a}, v{a}, v{a+1}\nv_add_f32 v{a+2}, v{a+2}, v{a+3}")
        A(f"v_mul_f32 v{a}, {fl(1/576)}, v{a}\nv_mul_f32 v{a+2}, {fl(1/576)}, v{a+2}")
        A(f"v_fma_f32 v{a+2}, -v{a}, v{a}, v{a+2}\nv_max_f32 v{a+2}, 0, v{a+2}\nv_add_f32 v{a+3}, {fl(EPS)}, v{a+2}\nv_rsq_f32 v{a+4}, v{a+3}")
        if first:
            A(f"v_mul_f32 v{a+6}, v{a+4}, v{a+4}\nv_fmaak_f32 v{a+6}, v{a+6}, v{a+2}, {fl(EPS)}\nv_rsq_f32 v{a+6}, v{a+6}")
            A(f"v_bfe_u32 v{a+7}, v{vA}, 2, 8\nv_add_u32 v{a+7}, {LR2}, v{a+7}\nv_mul_f32 v{a+6}, {fl(-AS)}, v{a+6}\nds_write_b32 v{a+7}, v{a+6}")
        else: A(f"v_mul_f32 v{a+4}, {fl(-AS)}, v{a+4}")
        A(f"v_mul_f32 v{a+5}, v{a}, v{a+4}\nv_sub_f32 v{a+5}, 0, v{a+5}")
        for ks in range(18):
            for e in range(4):
                r = S0 + 4*ks + e; t = a + 8 + 2*e
                A(f"v_lshlrev_b32 v{t}, 16, v{r}\nv_and_b32 v{t+1}, 0xffff0000, v{r}")
            for e in range(4):
                t = a + 8 + 2*e
                A(f"v_pk_fma_f32 {v(t,2)}, {v(t,2)}, {v(a+4,2)}, {v(a+4,2)} op_sel:[0,0,1] op_sel_hi:[1,0,1]")
            for e in range(4):
                r = S0 + 4*ks + e; t = a + 8 + 2*e
                A(f"v_cvt_pk_bf16_f32 v{r}, v{t}, v{t+1}")
            off = ks * 4096
            A(f"ds_write_b128 v{vA if off < 36864 else vA2}, {v(S0+4*ks,4)} offset:{off if off < 36864 else off - 36864}")

    def gelu_pk(self, src, scale, dst):
        A = self.A; t = TMP; sp = scale & ~1; hi = scale & 1
        for e in (0, 2): A(f"v_pk_mul_f32 {v(src+e,2)}, {v(src+e,2)}, {v(sp,2)} op_sel:[0,{hi}] op_sel_hi:[1,{hi}]")
        for e in (0, 2): A(f"v_pk_fma_f32 {v(t+e,2)}, {v(src+e,2)}, {v(src+e,2)}, s[60:61]")
        for e in (0, 2): A(f"v_pk_mul_f32 {v(t+e,2)}, {v(t+e,2)}, {v(src+e,2)}")
        for e in range(4): A(f"v_exp_f32 v{t+e}, v{t+e}")
        for e in (0, 2): A(f"v_pk_add_f32 {v(t+e,2)}, {v(t+e,2)}, s[62:63]")
        for e in range(4): A(f"v_rcp_f32 v{t+e}, v{t+e}")
        for e in (0, 2): A(f"v_pk_mul_f32 {v(t+e,2)}, {v(t+e,2)}, {v(src+e,2)}")
        for e in (0, 2): A(f"v_cvt_pk_bf16_f32 v{dst+e//2}, v{t+e}, v{t+e+1}")
    def pub_pair(self, tp, base):
        A = self.A; o = OUT + 4*tp
        A(f"v_permlane16_swap_b32 v{o}, v{o+2}\nv_permlane16_swap_b32 v{o+1}, v{o+3}")
        self.emit(f"buffer_store_dwordx4 {v(o,4)}, v{vG+tp}, s[12:15], s{base} offen sc1")
    def pub_shared(self, r, base):
        A = self.A
        A("s_mov_b32 exec_hi, 0")
        self.emit(f"buffer_store_dwordx2 {v(r,2)}, v{vGS}, s[12:15], s{base} offen sc1")
        A("s_mov_b32 exec_hi, -1")
    def epi_h(self):
        A = self.A; acc = self.acc
        A(f"s_mov_b32 s60, {fl(KG)}\ns_mov_b32 s61, s60\ns_mov_b32 s62, 1.0\ns_mov_b32 s63, 1.0\ns_add_u32 s59, s{sCL}, {H1}")
        for tp in range(2):
            for e in range(2): self.gelu_pk(acc + 8*tp + 4*e, R2 + 2*tp + e, OUT + 4*tp + 2*e)
            self.pub_pair(tp, 59)
        A(f"v_cvt_pk_bf16_f32 v{KS}, v{SACC}, v{SACC+1}\nv_cvt_pk_bf16_f32 v{KS+1}, v{SACC+2}, v{SACC+3}")
        self.gelu_pk(SACC, R2, TMP + 4)
        self.pub_shared(TMP + 4, 59)
    def epi_k_shared(self):
        t = TMP
        return [[f"v_and_b32 v{t}, 1, v{vQ}", f"v_mul_u32_u24 v{t}, 640, v{t}"], [f"v_bfe_u32 v{t+1}, v{vA}, 1, 9", f"s_mov_b32 s3, {LK+128}\nv_add3_u32 v{t}, v{t}, v{t+1}, s3"],
                [f"s_mov_b32 exec_lo, 0\nds_write_b64 v{t}, {v(KS,2)}\ns_mov_b32 exec_lo, -1"]]
    def epi_kq(self, base, stride, q0, tok0):
        acc = self.acc; t = TMP
        L = [[f"s_lshl_b32 s3, s{sW}, 2\ns_add_u32 s3, s3, {q0}\nv_add_u32 v{t}, s3, v{vQ}", f"v_mul_u32_u24 v{t}, {stride}, v{t}"], [f"v_add_u32 v{t}, {base + tok0*8}, v{t}"]]
        for u in range(4):
            L.append([f"v_bfe_u32 v{t+1}, v{vA+u}, 1, 9", f"v_add_u32 v{t+1}, v{t}, v{t+1}"])
            L.append([f"v_cvt_pk_bf16_f32 v{OUT+2*u}, v{acc+4*u}, v{acc+4*u+1}", f"v_cvt_pk_bf16_f32 v{OUT+2*u+1}, v{acc+4*u+2}, v{acc+4*u+3}"])
            L.append([f"ds_write_b64 v{t+1}, {v(OUT+2*u,2)}"])
        return L
    def epi_v(self):
        acc = self.acc; t = TMP
        L = [[f"s_mul_i32 s3, s{sW}, 5120\ns_add_u32 s3, s3, {LV+256}\nv_lshl_add_u32 v{t}, v{vQ}, 8, s3"]]
        for u in range(4):
            L.append([f"v_add_u32 v{t+1}, v{t}, v{vA+u}", f"ds_write_b128 v{t+1}, {v(acc+4*u,4)}"])
        L.append([f"v_cvt_pk_bf16_f32 v{OUT}, v{SACC}, v{SACC+1}", f"v_cvt_pk_bf16_f32 v{OUT+1}, v{SACC+2}, v{SACC+3}"])
        L.append([f"v_lshrrev_b32 v{t+1}, 1, v{vA}", f"v_add_u32 v{t+1}, {LQ + 16*512}, v{t+1}"])
        L.append([f"s_mov_b32 exec_hi, 0\nds_write_b64 v{t+1}, {v(OUT,2)}\ns_mov_b32 exec_hi, -1"])
        L.append([f"v_lshl_add_u32 v{t+1}, v{vQ}, 8, v{vA}", f"v_add_u32 v{t+1}, {LV + 256 + 14*1280}, v{t+1}"])
        L.append([f"s_mov_b32 exec_lo, 0\nds_write_b128 v{t+1}, {v(SACC,4)}\ns_mov_b32 exec_lo, -1"])
        return L
    def epi_x(self):
        A = self.A; acc = self.acc; t = TMP
        A(f"s_mov_b32 s60, {fl(-1/AS)}\ns_mov_b32 s61, s60\ns_add_u32 s59, s{sCL}, {X1}")
        oth = ACC + 16 - (acc - ACC)
        def four(src, xn, dst):
            for e in range(2): A(f"v_pk_fma_f32 {v(xn+2*e,2)}, {v(src+2*e,2)}, s[60:61], {v(xn+2*e,2)}")
            for e in range(2): A(f"v_cvt_pk_bf16_f32 v{dst+e}, v{xn+2*e}, v{xn+2*e+1}")
        for tp in range(2):
            for e in range(2): four(acc + 8*tp + 4*e, oth + 8*tp + 4*e, OUT + 4*tp + 2*e)
            self.pub_pair(tp, 59)
        four(SACC, XB, TMP + 4)
        self.pub_shared(TMP + 4, 59)
    def pre_x(self):
        oth = self.acc; L = []
        for k in range(10):
            d = oth + 2*k if k < 8 else XB + 2*(k-8)
            L.append([f"v_accvgpr_read_b32 v{d+1}, a{XN+k}"])
            L.append([f"v_lshlrev_b32 v{d}, 16, v{d+1}", f"v_and_b32 v{d+1}, 0xffff0000, v{d+1}"])
        return L
    def epi_g3(self, p):
        acc = self.acc; n = 16
        T = lambda i: TMP + (i % 6)
        fm = lambda i: f"v_fmaak_f32 v{T(i)}, v{acc+i}, v{acc+i}, {fl(KG)}"
        m1 = lambda i: f"v_mul_f32 v{T(i)}, v{T(i)}, v{acc+i}"
        ex = lambda i: f"v_exp_f32 v{T(i)}, v{T(i)}"
        ad = lambda i: f"v_add_f32 v{T(i)}, 1.0, v{T(i)}"
        rc = lambda i: f"v_rcp_f32 v{T(i)}, v{T(i)}"
        cv = lambda i: f"v_cvt_pk_bf16_f32 v{OUT + i//2}, v{T(i)}, v{T(i+1)}"
        S = []; ok = lambda i: 0 <= i < n
        if p == 8: S.append([f"v_add_u32 v{vD+u}, 8192, v{vD+u}" for u in range(4)])
        for j in range(n + 1):
            a = [f(i) for f, i in ((fm, j), (ad, j-1)) if ok(i)]
            if a: S.append(a)
            if ok(j-1): S.append([rc(j-1)])
            b = [f(i) for f, i in ((m1, j), (m1, j-1)) if ok(i)]
            if b: S.append(b)
            if ok(j): S.append([ex(j)])
            if j % 4 == 0 and j >= 4:
                u = j // 4 - 1
                S.append([cv(j-4), cv(j-2), f"ds_write_b64 v{vD+u}, {v(OUT+2*u,2)} offset:{min(p,7)*8192}"])
        return S
    def epi_g4(self, p):
        acc = self.acc; S = []
        if p == 0: S.append([f"s_lshl_b32 s3, s{sF}, 13\ns_lshl_b32 s22, s{sW}, 11\ns_add_u32 s3, s3, s22\ns_add_u32 s{sPS}, s3, s{sPT}\ns_add_u32 s59, s{sPS}, {8*65536}"])
        else: S.append([f"s_add_u32 s59, s{sOWN}, {p}\ns_and_b32 s59, s59, 7\ns_lshl_b32 s59, s59, 16\ns_add_u32 s59, s59, s{sPS}"])
        for tp in range(2):
            for k in (0, 4): S.append([f"v_cvt_pk_bf16_f32 v{OUT+4*tp+(k+e)//2}, v{acc+8*tp+k+e}, v{acc+8*tp+k+e+1}" for e in (0, 2)])
            S.append([f"buffer_store_dwordx4 {v(OUT+4*tp,4)}, v{vL16}, s[12:15], s59 offen offset:{tp*1024} sc1"])
            if tp == 0 and p < 7: S += [[] for _ in range(30)]
        return S

    def attention(self):
        A = self.A
        Qr = S0; Kr = [S0 + 10, S0 + 20]; Vr = [S0 + 30, S0 + 50]; Lg = ACC; O = ACC + 8; t = TMP
        ak, akh, av, avh = ACC + 26, ACC + 27, ACC + 28, ACC + 29
        A(f"s_lshr_b32 s22, s{sW}, 1\ns_mul_i32 s22, s22, 9\ns_and_b32 s23, s{sW}, 1\ns_mul_i32 s3, s23, 5\ns_add_u32 s64, s22, s3\ns_add_u32 s65, s22, 4")
        A(f"v_lshlrev_b32 v{t}, 3, v0")
        A(f"s_lshl_b32 s3, s64, 9\ns_add_u32 s3, s3, {LQ}\nv_add_u32 v{t+1}, s3, v{t}")
        for c in range(4): A(f"ds_read_b64 {v(Qr+2*c,2)}, v{t+1} offset:{c*512}")
        A(f"s_lshl_b32 s3, s65, 9\ns_lshl_b32 s22, s23, 2\ns_add_u32 s3, s3, s22\ns_add_u32 s3, s3, {LQ}\nv_add_u32 v{t+2}, s3, v{t}\nds_read_b32 v{Qr+8}, v{t+2}")
        A(f"s_mul_i32 s3, s64, 640\ns_add_u32 s59, s3, {LK+16}\nv_add_u32 v{ak}, s59, v{t}\ns_lshl_b32 s3, s3, 1\ns_add_u32 s3, s3, {LV+32}\nv_add_u32 v{av}, s3, v{vL16}")
        A(f"s_mul_i32 s3, s65, 640\ns_add_u32 s3, s3, s22\ns_add_u32 s59, s3, {LK+16}\nv_add_u32 v{akh}, s59, v{t}\ns_lshl_b32 s3, s3, 1\ns_add_u32 s3, s3, {LV+32}\nv_add_u32 v{avh}, s3, v{vL16}")
        def rk(j):
            for c in range(4): A(f"ds_read_b64 {v(Kr[j%2]+2*c,2)}, v{ak} offset:{c*640 + (14-2*j)*8}")
            A(f"ds_read_b32 v{Kr[j%2]+8}, v{akh} offset:{(14-2*j)*8}")
        def rv(j):
            for c in range(4): A(f"ds_read_b128 {v(Vr[j%2]+4*c,4)}, v{av} offset:{c*1280 + (14-2*j)*16}")
            A(f"ds_read_b64 {v(Vr[j%2]+16,2)}, v{avh} offset:{(14-2*j)*16}")
        rk(0); rk(1)
        for j in range(8):
            for d in range(9): A(f"v_dot2_f32_bf16 v{Lg+j}, v{Qr+d}, v{Kr[j%2]+d}, {'v%d' % (Lg+j) if d else 0}")
            if j + 2 < 8: rk(j + 2)
            elif j == 6: rv(0)
            else: rv(1)
        A(f"s_lshl_b32 s3, s{sM}, 6\nv_add_u32 v{t}, s3, v0\nv_mov_b32 v{t+1}, {fl(-1e9 * 18 ** 0.5)}")
        for j in range(1, 8): A(f"v_cmp_gt_u32 vcc, {2*j}, v{t}\nv_cndmask_b32 v{Lg+j}, v{Lg+j}, v{t+1}, vcc")
        A(f"v_max3_f32 v{t}, v{Lg}, v{Lg+1}, v{Lg+2}\nv_max3_f32 v{t+1}, v{Lg+3}, v{Lg+4}, v{Lg+5}\nv_max3_f32 v{t}, v{t}, v{Lg+6}, v{Lg+7}\nv_max_f32 v{t}, v{t}, v{t+1}")
        for j in range(8): A(f"v_sub_f32 v{Lg+j}, v{Lg+j}, v{t}")
        for j in range(8): A(f"v_mul_f32 v{Lg+j}, {fl(SCL)}, v{Lg+j}")
        for j in range(8): A(f"v_exp_f32 v{Lg+j}, v{Lg+j}")
        A(f"v_pk_add_f32 {v(t,2)}, {v(Lg,2)}, {v(Lg+2,2)}\nv_pk_add_f32 {v(t+2,2)}, {v(Lg+4,2)}, {v(Lg+6,2)}\nv_pk_add_f32 {v(t,2)}, {v(t,2)}, {v(t+2,2)}\nv_add_f32 v{t}, v{t}, v{t+1}")
        A(f"v_rcp_f32 v{t}, v{t}\nv_mul_f32 v{t}, {fl(-AS)}, v{t}")
        for j in range(8):
            hi = j & 1
            for d in range(9):
                if j == 0: A(f"v_pk_mul_f32 {v(O+2*d,2)}, {v(Vr[0]+2*d,2)}, {v(Lg,2)} op_sel_hi:[1,0]")
                else: A(f"v_pk_fma_f32 {v(O+2*d,2)}, {v(Vr[j%2]+2*d,2)}, {v(Lg+j-hi,2)}, {v(O+2*d,2)} op_sel:[0,{hi},0] op_sel_hi:[1,{hi},1]")
            if j + 2 < 8: rv(j + 2)
        for d in range(9): A(f"v_pk_mul_f32 {v(O+2*d,2)}, {v(O+2*d,2)}, {v(t,2)} op_sel_hi:[1,0]")
        for d in range(9): A(f"v_cvt_pk_bf16_f32 v{Qr+d}, v{O+2*d}, v{O+2*d+1}")
        for c in range(5):
            if c < 4: A(f"s_add_u32 s3, s64, {c}")
            else: A("s_mov_b32 s3, s65")
            A(f"s_lshr_b32 s59, s3, 1\ns_lshl_b32 s59, s59, 10\ns_and_b32 s3, s3, 1\ns_lshl_b32 s3, s3, 3\ns_add_u32 s3, s3, s59\ns_add_u32 s3, s3, {LO}")
            if c == 4: A("s_add_u32 s3, s3, s22")
            A(f"v_add_u32 v{t+1}, s3, v{vL16}")
            A(f"ds_write_b64 v{t+1}, {v(Qr+2*c,2)}" if c < 4 else f"ds_write_b32 v{t+1}, v{Qr+8}")
        A.wait(lg=0)

    def final(self):
        A = self.A; acc = self.acc; t = TMP; P = RING
        A(f"v_and_b32 v{vP}, 7, v0\ns_lshl_b32 s3, s{sM}, 3\nv_add_lshl_u32 v{vP}, v{vP}, s3, 7")
        self.poll_issue(vP, vP+1, 3)
        RX = S0; RX1 = S0 + 8; ga = S0 + 16
        A(f"s_lshl_b32 s22, s{sOWN}, 7\ns_lshl_b32 s3, s{sW}, 5\ns_add_u32 s22, s22, s3\ns_add_u32 s22, s22, s{sCL}")
        A(f"s_lshl_b32 s23, s{sOWN}, 13\ns_add_u32 s23, s23, s{sCL}\ns_add_u32 s23, s23, {X1 - 8192}")
        for u in range(4):
            A(f"v_bfe_u32 v{t}, v{vA+u}, 4, 6\nv_mul_u32_u24 v{t}, 1152, v{t}\nv_lshl_add_u32 v{ga+u}, v{vQ}, 3, v{t}")
            A(f"buffer_load_dwordx2 {v(RX+2*u,2)}, v{ga+u}, s[8:11], s22 offen")
            A(f"buffer_load_dwordx2 {v(RX1+2*u,2)}, v{vD+u}, s[12:15], s23 offen sc1")
        ex, ex1, ea = S0 + 20, S0 + 21, S0 + 22
        A(f"s_lshr_b32 s64, s{sF}, 1\ns_and_b32 s3, s{sF}, 1\ns_lshl_b32 s3, s3, 1\ns_xor_b32 s3, s3, s64\nv_lshrrev_b32 v{t}, 5, v0\nv_xor_b32 v{t}, s3, v{t}\nv_lshl_add_u32 v{t}, v{t}, 4, v{vI}")
        A(f"v_and_b32 v{t+1}, 1, v{vQ}\nv_lshlrev_b32 v{t+1}, 2, v{t+1}\nv_mul_u32_u24 v{ea}, 1152, v{t}\nv_add_u32 v{ea}, v{ea}, v{t+1}\nv_lshl_add_u32 v{t}, v{t}, 4, v{t+1}")
        A(f"s_lshl_b32 s65, s64, 5\ns_lshl_b32 s3, s{sW}, 3\ns_add_u32 s65, s65, s3\ns_add_u32 s65, s65, s{sCL}\ns_add_u32 s65, s65, 1024")
        A(f"buffer_load_dword v{ex}, v{ea}, s[8:11], s65 offen")
        A(f"s_lshl_b32 s59, s64, 1\ns_lshr_b32 s3, s{sW}, 1\ns_add_u32 s59, s59, s3\ns_lshl_b32 s59, s59, 10\ns_and_b32 s3, s{sW}, 1\ns_lshl_b32 s3, s3, 3\ns_add_u32 s59, s59, s3\ns_add_u32 s59, s59, s{sCL}\ns_add_u32 s59, s59, {X1 + 65536}")
        A(f"buffer_load_dword v{ex1}, v{t}, s[12:15], s59 offen sc1")
        self.poll_check(vP, vP+1, 3)
        self.stamp()
        A(f"s_lshl_b32 s59, s{sOWN}, 16\ns_lshl_b32 s3, s{sW}, 11\ns_add_u32 s59, s59, s3\ns_add_u32 s59, s59, s{sPT}")
        for j in range(7):
            A(f"s_add_u32 s3, s{sF}, {j+1}\ns_and_b32 s3, s3, 7\ns_lshl_b32 s3, s3, 13\ns_add_u32 s57, s3, s59")
            for tp in range(2): A(f"buffer_load_dwordx4 {v(P+8*j+4*tp,4)}, v{vL16}, s[12:15], s57 offen offset:{tp*1024} sc1")
        E = P + 56
        A(f"v_lshlrev_b32 v{t}, 13, v{vQ}\nv_lshl_add_u32 v{t}, v{vI}, 4, v{t}\ns_lshl_b32 s3, s{sF}, 10\ns_lshl_b32 s59, s{sW}, 8\ns_add_u32 s3, s3, s59\ns_add_u32 s3, s3, s{sPT}\ns_add_u32 s57, s3, {8*65536}\ns_add_u32 s59, s57, 32768")
        A(f"buffer_load_dwordx4 {v(E,4)}, v{t}, s[12:15], s57 offen sc1\nbuffer_load_dwordx4 {v(E+4,4)}, v{t}, s[12:15], s59 offen sc1")
        def unpack(dst, r): A(f"v_lshlrev_b32 v{dst}, 16, v{r}\nv_and_b32 v{dst+1}, 0xffff0000, v{r}")
        RS = S0 + 24
        for k in range(8):
            unpack(RS + 2*k, RX + k); unpack(t, RX1 + k)
            A(f"v_pk_add_f32 {v(RS+2*k,2)}, {v(RS+2*k,2)}, {v(t,2)}")
        for j in range(7):
            for k in range(8):
                tt = t + 2 * (k % 2)
                unpack(tt, P + 8*j + k)
                A(f"v_pk_add_f32 {v(acc+2*k,2)}, {v(acc+2*k,2)}, {v(tt,2)}")
        A(f"s_mov_b32 s60, {fl(-1/AS)}\ns_mov_b32 s61, s60")
        for k in range(8): A(f"v_pk_fma_f32 {v(acc+2*k,2)}, {v(acc+2*k,2)}, s[60:61], {v(RS+2*k,2)}")
        for k in range(8): A(f"v_cvt_pk_bf16_f32 v{OUT+k}, v{acc+2*k}, v{acc+2*k+1}")
        for tp in range(2):
            o = OUT + 4*tp
            A(f"v_bfe_u32 v{t}, v{vA+2*tp}, 4, 6\nv_and_b32 v{t+1}, 1, v{vQ}\nv_lshlrev_b32 v{t+1}, 4, v{t+1}\nv_xor_b32 v{t}, v{t}, v{t+1}\nv_mul_u32_u24 v{t}, 1152, v{t}\nv_lshrrev_b32 v{t+1}, 1, v{vQ}\nv_lshl_add_u32 v{t}, v{t+1}, 4, v{t}")
            A(f"v_permlane16_swap_b32 v{o}, v{o+2}\nv_permlane16_swap_b32 v{o+1}, v{o+3}")
            A(f"buffer_store_dwordx4 {v(o,4)}, v{t}, s[16:19], s22 offen")
        a = RS
        for k in range(4):
            unpack(a + 2*k, E + k); unpack(t, E + 4 + k)
            A(f"v_pk_add_f32 {v(a+2*k,2)}, {v(a+2*k,2)}, {v(t,2)}")
        for k in range(4): A(f"v_permlane32_swap_b32 v{a+k}, v{a+4+k}")
        for k in (0, 2): A(f"v_pk_add_f32 {v(a+k,2)}, {v(a+k,2)}, {v(a+4+k,2)}")
        for k in range(2): A(f"v_permlane16_swap_b32 v{a+k}, v{a+2+k}")
        A(f"v_pk_add_f32 {v(a,2)}, {v(a,2)}, {v(a+2,2)}")
        unpack(t, ex); unpack(t+2, ex1)
        A(f"v_pk_add_f32 {v(t,2)}, {v(t,2)}, {v(t+2,2)}\nv_pk_fma_f32 {v(t,2)}, {v(a,2)}, s[60:61], {v(t,2)}\nv_cvt_pk_bf16_f32 v{t}, v{t}, v{t+1}")
        A(f"buffer_store_dword v{t}, v{ea}, s[16:19], s65 offen")

vI, vQ, vL16, vTID, ONE, vFLO, vSHR, vGS = 1, 2, 3, 4, 5, 6, 7, 8
vG = 9
vP = 11
vA = 14; vA2 = 18; vD = 22
TMP = 26
OUT = 32
ACC = 40
SACC = 72
XB = 76
R2 = 76; KS = 80
RING = 88
S0 = 184
SHF = 216; XN = 228
vH = 84
sW, sF, sM, sE, sSH, sOWN, sP4, sCL, sPT, sF9, sPB, sPS, sKV = 24, 25, 26, 27, 28, 29, 30, 31, 32, 33, 34, 35, 36
sB3 = 38; sK4 = 47

def build_file(stamps=False, c=4, extra=None, pf=False):
    DEP = 23
    m = Main(c=c, stamps=stamps, DEP=DEP)
    pk = "pack_kernel"; mn = "main_kernel"
    LL = [f"; @launch kernel={pk} grid=(402,1,1) block=(256,1,1) lds=36864", f"; @launch kernel={mn} grid=(256,1,1) block=(256,1,1) lds={LDS_END}"]
    E = "; @launch kernel=empty_kernel grid=(256,1,1) block=(64,1,1) lds=0"
    for e in (extra or []): LL.insert(e, E)
    txt = header(LL)
    m.pf = pf
    txt += gen_pack(pk) + m.gen(mn)
    if extra: txt += kstart("empty_kernel") + "s_endpgm\n"
    txt += '.section .rodata,"a"\n' + kdesc(pk, 72, 64) + kdesc(mn, 512, 102, 256)
    if extra: txt += kdesc("empty_kernel", 8, 16)
    return txt, m

if __name__ == "__main__":
    t, m = build_file(stamps="stamps" in sys.argv)
    open(sys.argv[1], "w").write(t)
    print(m.A.stats, "nops", m.A.nops, "stamps", m.nst, "WS_END", hex(WS_END))
```

```python
import sys; sys.path.insert(0,'gen')
from asmlib import *
import k1
SIZES = [2359296, 1990656, 663552, 0, 663552, 663552, 5308416, 5308416, 2359296, 0, k1.WS_END]
def touch(name, mode, which):
    A = Asm()
    A("s_cmp_ge_u32 s2, 256\ns_cbranch_scc0 T_go\ns_endpgm\nT_go:")
    for b in which:
        sz = SIZES[b]
        A(f"s_load_dwordx2 s[4:5], s[0:1], {8*b}"); A.wait(lg=0)
        k1.srd(A, 8, 4, sz)
        if mode == "page":
            A("v_lshlrev_b32 v1, 16, v0")
            for j in range((sz + (1 << 24) - 1) >> 24):
                A(f"s_mov_b32 s3, {j << 24}\nbuffer_load_dword v2, v1, s[8:11], s3 offen"); A.vm = []
        else:
            A("s_lshl_b32 s3, s2, 12\nv_lshlrev_b32 v1, 4, v0\nv_add_u32 v1, s3, v1")
            for j in range((sz + (1 << 20) - 1) >> 20):
                A(f"s_mov_b32 s3, {j << 20}\nbuffer_load_dwordx4 v[4:7], v1, s[8:11], s3 offen"); A.vm = []
    A.force_wait(vm=0)
    A("s_endpgm")
    return kstart(name) + A.text() + "\n"
base = k1.build_file(pf=46000)[0]
for n, (mode, which) in dict(a=("page", []), b=("page", [0,1,2,4,5,6,7,8,10]), c=("full", [0,1,2,4,5,6,7]), d=("page", [8, 10]), e=("full", [10]), f=("page", [0,1,2,4,5,6,7])).items():
    t = "; @launch kernel=touch_kernel grid=(256,1,1) block=(256,1,1) lds=0\n" + base
    t = t.replace('.section .rodata,"a"\n', touch("touch_kernel", mode, which) + '.section .rodata,"a"\n' + kdesc("touch_kernel", 16, 32))
    open('t_%s.s' % n, 'w').write(t)
```

```python
import sys, struct, math
sys.path.insert(0, "gen")
from asmlib import *

def fl(x): return "0x%08x" % struct.unpack("<I", struct.pack("<f", x))[0]
C1 = 2.0 * math.sqrt(2.0 / math.pi) * math.log2(math.e)
C2 = C1 * 0.044715
AS = C2 ** (1.0 / 3.0)
KG = C1 / AS
EPS = 1e-5
SCL = 18 ** -0.5 * math.log2(math.e)

FL = 0
FA, FB, F1, F2, F3, F4 = range(6)
STAMP = 0x20000
PKE = 0x100000; PKE_F = 5 * 73728 + 3 * 18432
E_T0 = 0; E_M = 18432; E_T1 = E_M + 5 * 73728; E_T2 = E_T1 + 18432
PK3 = PKE + 8 * PKE_F; PK3_F = 663552
PK4 = PK3 + 8 * PK3_F; PK4_F = 9 * 4 * 21 * 1024
H1 = PK4 + 8 * PK4_F
X1 = H1 + 32 * 73728
KVH = X1 + 32 * 73728
PART = KVH + 256 * 8192
WS_END = PART + 32 * 9 * 65536
OOB = 0x80000000
LA = 0; LSH0 = 73728; LSH1 = 92160; LO = LSH1; LK = 110592; LQ = 122112; LV = 131328; LR2 = 154368; LDS_END = 154624
MH, MK, MV, MQ, MX = 0, 1, 2, 3, 4

vI, vQ, vL16, vTID, ONE, vFLO, vSHR, vGS = 1, 2, 3, 4, 5, 6, 7, 8
vG = 9
vP = 11
vA = 14; vA2 = 18; vD = 22
TMP = 26
OUT = 32
ACC = 40
SACC = 72
XB = 76
R2 = 76
vH = 84
vPF = 87
RING = 88
S0 = 184
SHF = 216; XN = 228
sW, sF, sM, sE, sEW, sOWN, sP4, sCL, sPT, sF9, sPB, sPS, sKV, sRK = 24, 25, 26, 27, 28, 29, 30, 31, 32, 33, 34, 35, 36, 37
sB3 = 38; sK4 = 47
WS = "s[12:15]"

def srd(A, r, lo, size):
    A(f"s_mov_b32 s{r}, s{lo}\ns_mov_b32 s{r+1}, s{lo+1}\ns_mov_b32 s{r+2}, {size}\ns_mov_b32 s{r+3}, 0x20000")

class Main:
    def __init__(self, stamps=None, **o):
        self.A = Asm(); self.stamps = stamps; self.names = []; self.nlab = 0
        d = dict(c=4, G=3, NR=24, codepf=48000, sigpos=9, l2pf=True, pre_h=8, h_pub=8, f1_issue=(2, 9), f1_check=(2, 17), xfirst=0, p1=5)
        d.update(o); self.o = d
        for k, x in d.items(): setattr(self, k, x)
    def stamp(self, name):
        if self.stamps is not None and (self.stamps == "all" or name in self.stamps) and len(self.names) < 15:
            self.A(f"s_memrealtime {s(70 + 2*len(self.names), 2)}"); self.names.append(name)
    def lab(self, p):
        self.nlab += 1; return f"L_{p}{self.nlab}"

    def poll_issue(self, vaddr, vdst, typ, srd_=WS):
        so = "0"
        if typ: self.A(f"s_mov_b32 s57, {FL + typ*16384}"); so = "s57"
        return self.A(f"buffer_load_dword v{vdst}, v{vaddr}, {srd_}, {so} offen sc1")
    def poll_check(self, vaddr, vdst, typ, srd_=WS, need="1"):
        A = self.A; ok = self.lab("ok"); lp = self.lab("sp")
        A(f"v_cmp_gt_u32 vcc, {need}, v{vdst}\ns_mov_b32 s58, 0\ns_mov_b32 s57, {FL + typ*16384}")
        A(f"s_cbranch_vccz {ok}")
        sn = A.snap()
        A(f"{lp}:\nbuffer_load_dword v{vdst}, v{vaddr}, {srd_}, s57 offen sc1\ns_add_u32 s58, s58, 1\ns_cmp_gt_u32 s58, 400000\ns_cbranch_scc1 {ok}")
        A(f"v_cmp_gt_u32 vcc, {need}, v{vdst}\ns_cbranch_vccnz {lp}")
        A(f"{ok}:"); A.restore(sn)
    def barrier(self):
        self.A.wait(lg=0); self.A("s_barrier")
    def flag_store(self, typ):
        so = "0"
        if typ: self.A(f"s_mov_b32 s57, {FL + typ*16384}"); so = "s57"
        self.A(f"buffer_store_dword v{ONE}, v{vFLO}, {WS}, {so} offen sc1")
    def allflag_addr(self):
        self.A(f"v_lshlrev_b32 v{vP}, 6, v{vTID}")
    def prefetch(self, sbase, off, nbytes):
        if not self.l2pf: return
        A = self.A; nsh = 4 * self.c
        lines = nbytes // 128; per = -(-lines // nsh)
        for j in range(0, per, 256):
            n = min(256, per - j)
            A(f"s_mul_i32 s3, s{sRK}, {per}\ns_add_u32 s3, s3, {j}\nv_min_u32 v{vPF}, {n-1}, v{vTID}\nv_add_u32 v{vPF}, s3, v{vPF}\nv_min_u32 v{vPF}, {lines-1}, v{vPF}\nv_lshlrev_b32 v{vPF}, 7, v{vPF}")
            A(f"s_add_u32 s57, s{sbase}, {off}")
            A(f"buffer_load_dword a255, v{vPF}, {WS}, s57 offen")
            A.vm[-1] = (A.vm[-1][0], set())

    def job_dma(self, stage):
        A = self.A; t = TMP
        A(f"s_mul_i32 s59, s{sW}, 9216\ns_add_u32 s59, s59, {stage}\nv_mul_u32_u24 v{t}, 911, v0")
        for j in range(9):
            a = t + 1 + 2 * (j % 2)
            A(f"v_add_u32 v{a}, {64*j*911}, v{t}\nv_lshrrev_b32 v{a}, 16, v{a}\nv_lshlrev_b32 v{a+1}, 5, v{a}\nv_and_b32 v{a+1}, 64, v{a+1}\nv_xor_b32 v{a+1}, v{a+1}, v{vL16}\nv_mad_u32_u24 v{a}, v{a}, s61, v{a+1}")
            if j % 4 == 0: A(f"s_add_u32 m0, s59, {1024*j}\ns_add_u32 s57, s60, {1024*j}")
            self.job_id = A(f"buffer_load_dwordx4 v{a}, s[20:23], s57 offen offset:{1024*(j%4)} lds")
    def job_pack(self, stage, D, early):
        A = self.A; t = TMP
        A(f"s_mul_i32 s59, s{sW}, 9216\ns_add_u32 s59, s59, {stage}")
        A(f"v_bfe_u32 v{t}, v0, 2, 2\nv_and_b32 v{t+1}, 2, v{t}\nv_lshlrev_b32 v{t+1}, 5, v{t+1}\nv_mul_u32_u24 v{t}, 1152, v{t}\nv_add_u32 v{t}, s59, v{t}")
        A(f"v_and_b32 v{t+3}, 3, v0\nv_lshlrev_b32 v{t+2}, 5, v{vQ}\nv_lshl_add_u32 v{t+2}, v{t+3}, 3, v{t+2}")
        A(f"v_mul_lo_u32 v{vP}, v{vQ}, s63\nv_lshl_add_u32 v{vP}, v{vI}, 4, v{vP}")
        if early:
            A(f"v_lshrrev_b32 v{t+4}, 1, v{t+3}\nv_lshl_add_u32 v{t+4}, v{vQ}, 1, v{t+4}\nv_mul_u32_u24 v{t+4}, 144, v{t+4}\nv_and_b32 v{t+3}, 1, v{t+3}\nv_lshl_add_u32 v{t+4}, v{t+3}, 3, v{t+4}\nv_add_u32 v{t+4}, 128, v{t+4}")
            A(f"v_lshrrev_b32 v{vP+1}, 3, v0\nv_mul_lo_u32 v{vP+1}, v{vP+1}, s64\nv_and_b32 v{t+3}, 7, v0\nv_lshl_add_u32 v{vP+1}, v{t+3}, 4, v{vP+1}")
            A("s_lshl_b32 s3, s64, 3\ns_add_u32 s3, s3, s62\ns_cmp_eq_u32 s65, 144\ns_cselect_b32 s66, s66, s3\ns_cselect_b64 vcc, -1, 0")
            A(f"v_add_u32 v{t+3}, 1024, v{t+2}\nv_cndmask_b32 v{t+4}, v{t+3}, v{t+4}, vcc\nv_cndmask_b32 v{vP+1}, v{vP}, v{vP+1}, vcc")
        A.wait_id(self.job_id)
        if not early: A(f"v_xad_u32 v{t+3}, v{t+2}, v{t+1}, v{t}")
        for j in range(9):
            if early:
                A(f"v_xad_u32 v{t+3}, v{t+2 if j < 8 else t+4}, v{t+1}, v{t}"); o = 0
                if j < 7: A(f"v_add_u32 v{t+2}, s65, v{t+2}")
            else: o = 128 * j
            A(f"ds_read_b64_tr_b16 {v(D+4*j,2)}, v{t+3} offset:{o}\nds_read_b64_tr_b16 {v(D+2+4*j,2)}, v{t+3} offset:{o+4608}")
        for j in range(9):
            if early and j == 8: self.emit(f"buffer_store_dwordx4 {v(D+4*j,4)}, v{vP+1}, {WS}, s66 offen sc1")
            else:
                self.emit(f"buffer_store_dwordx4 {v(D+4*j,4)}, v{vP}, {WS}, s62 offen sc1")
                if j < 8: A("s_add_u32 s62, s62, s64")
    def job1_decode(self):
        A = self.A
        A(f"s_lshl_b32 s67, s2, 2\ns_add_u32 s67, s67, s{sW}")
        A("s_mov_b32 s23, 0x20000\ns_mov_b32 s65, 128\ns_mov_b32 s66, 0\ns_mov_b32 s61, 0")
        def div(q, r, src, n, magic, sh): A(f"s_mul_i32 s{q}, s{src}, {magic}\ns_lshr_b32 s{q}, s{q}, {sh}\ns_mul_i32 s{r}, s{q}, {n}\ns_sub_u32 s{r}, s{src}, s{r}")
        A("s_cmp_ge_u32 s67, 360\ns_cbranch_scc1 J_ne")
        div(68, 69, 67, 72, 911, 16)
        A("s_mov_b32 s20, s40\ns_mov_b32 s21, s41\ns_mov_b32 s22, 1990656\ns_mov_b32 s61, 2304\ns_mov_b32 s65, 144")
        A(f"s_mov_b32 s66, {E_T1}\ns_mov_b32 s60, 1152")
        A(f"s_cmp_eq_u32 s68, {MV}\ns_cselect_b32 s66, {E_T1+128}, s66\ns_cselect_b32 s60, 2304, s60")
        A(f"s_cmp_eq_u32 s68, {MQ}\ns_cselect_b32 s66, {E_T2}, s66\ns_cselect_b32 s60, 0, s60")
        A(f"s_cmp_eq_u32 s68, {MH}\ns_cselect_b32 s20, s44, s20\ns_cselect_b32 s21, s45, s21\ns_cselect_b32 s22, 663552, s22\ns_cselect_b32 s61, 0, s61\ns_cselect_b32 s66, {E_T0}, s66\ns_cselect_b32 s60, 0, s60")
        A(f"s_cmp_eq_u32 s68, {MX}\ns_cselect_b32 s20, s46, s20\ns_cselect_b32 s21, s47, s21\ns_cselect_b32 s22, 663552, s22\ns_cselect_b32 s61, 0, s61\ns_cselect_b32 s66, {E_T2+128}, s66\ns_cselect_b32 s60, 0, s60")
        A("s_add_u32 s3, s61, 1152\ns_mul_i32 s3, s3, s69\ns_lshl_b32 s3, s3, 3\ns_add_u32 s60, s60, s3")
        A(f"s_lshl_b32 s3, s69, 8\ns_add_u32 s3, s3, {PKE}\ns_add_u32 s66, s66, s3\ns_mul_i32 s62, s68, 73728\ns_add_u32 s62, s62, s3\ns_add_u32 s62, s62, {E_M}")
        A(f"s_mov_b32 s63, 18432\ns_mov_b32 s64, {PKE_F}\ns_branch J_done\nJ_ne:")
        A("s_cmp_ge_u32 s67, 432\ns_cbranch_scc1 J_w3")
        A("s_sub_u32 s67, s67, 360"); div(68, 69, 67, 9, 57, 9)
        A(f"s_mov_b32 s20, s42\ns_mov_b32 s21, s43\ns_mov_b32 s22, 663552\ns_mul_i32 s60, s67, 9216")
        A(f"s_mul_i32 s62, s68, {PK4_F}\ns_lshl_b32 s3, s69, 8\ns_add_u32 s62, s62, s3\ns_add_u32 s62, s62, {PK4}\ns_mov_b32 s63, 21504\ns_mov_b32 s64, 86016\ns_branch J_done\nJ_w3:")
        A("s_sub_u32 s67, s67, 432"); div(68, 69, 67, 72, 911, 16)
        A(f"s_mov_b32 s20, s48\ns_mov_b32 s21, s49\ns_mov_b32 s22, 5308416\ns_mov_b32 s61, {9216-1152}\ns_mul_i32 s60, s69, 73728\ns_mul_i32 s3, s68, 1152\ns_add_u32 s60, s60, s3")
        A(f"s_mul_i32 s62, s68, {PK3_F}\ns_lshl_b32 s3, s69, 8\ns_add_u32 s62, s62, s3\ns_add_u32 s62, s62, {PK3}\ns_mov_b32 s63, 18432\ns_mov_b32 s64, 73728")
        A(f"s_cmp_ge_u32 s67, 576\ns_cselect_b32 s60, {OOB//2}, s60\ns_cselect_b32 s62, {OOB//2}, s62")
        A("J_done:")
    def job2_decode(self):
        A = self.A
        A(f"s_lshl_b32 s67, s{sW}, 8\ns_add_u32 s67, s67, s2")
        A("s_mov_b32 s20, s4\ns_mov_b32 s21, s5\ns_mov_b32 s22, 5308416\ns_mov_b32 s23, 0x20000\ns_mov_b32 s61, 0\ns_mul_i32 s60, s67, 9216")
        A(f"s_mul_i32 s68, s67, 911\ns_lshr_b32 s68, s68, 16\ns_mul_i32 s62, s68, {PK4_F - 72*256}\ns_lshl_b32 s3, s67, 8\ns_add_u32 s62, s62, s3\ns_add_u32 s62, s62, {PK4 + 3072}\ns_mov_b32 s63, 21504\ns_mov_b32 s64, 86016")
        A(f"s_cmp_ge_u32 s67, 576\ns_cselect_b32 s62, {OOB//2}, s62")

    def gen(self, name):
        A = self.A; c = self.c; per = 8 // c; lg = {1:0,2:1,4:2,8:3}
        t0, t1, t2, t3 = TMP, TMP+1, TMP+2, TMP+3
        A("s_cmp_ge_u32 s2, 256\ns_cbranch_scc0 M_go\ns_endpgm\nM_go:")
        self.stamp("start")
        A("s_load_dwordx2 s[8:9], s[0:1], 0\ns_load_dwordx4 s[40:43], s[0:1], 8\ns_load_dwordx8 s[44:51], s[0:1], 32\ns_load_dwordx4 s[52:55], s[0:1], 64\ns_load_dwordx2 s[12:13], s[0:1], 80")
        A(f"v_lshrrev_b32 v1, 6, v0\nv_mov_b32 v{vTID}, v0\nv_readfirstlane_b32 s{sW}, v1\nv_and_b32 v0, 63, v0")
        if self.codepf:
            A(f"s_getpc_b64 s[22:23]\nv_lshlrev_b32 v1, 7, v{vTID}\nv_min_u32 v2, {self.codepf - 32768}, v1\nv_add_u32 v2, 32768, v2")
            A("global_load_dword a255, v1, s[22:23]"); A.vm[-1] = (A.vm[-1][0], set())
            A("global_load_dword a255, v2, s[22:23]"); A.vm[-1] = (A.vm[-1][0], set())
        A("s_and_b32 s22, s2, 7\ns_lshr_b32 s23, s2, 3")
        A(f"s_and_b32 s{sF}, s22, {c-1}\ns_lshl_b32 s{sF}, s{sF}, {lg[per]}\ns_and_b32 s3, s23, {per-1}\ns_add_u32 s{sF}, s{sF}, s3")
        A(f"s_lshr_b32 s{sM}, s22, {lg[c]}\ns_mul_i32 s{sM}, s{sM}, {32//per}\ns_lshr_b32 s{sRK}, s23, {lg[per]}\ns_add_u32 s{sM}, s{sM}, s{sRK}")
        A(f"v_and_b32 v{vI}, 15, v0\nv_lshrrev_b32 v{vQ}, 4, v0\nv_lshlrev_b32 v{vL16}, 4, v0")
        A(f"s_lshl_b32 s3, s{sM}, 2\ns_add_u32 s3, s3, s{sW}\ns_lshl_b32 s3, s3, 4\nv_add_u32 v{vP}, s3, v{vI}\nv_mul_u32_u24 v{vP}, 1152, v{vP}\nv_lshl_add_u32 v{vP}, v{vQ}, 4, v{vP}")
        A(f"s_lshl_b32 s3, s2, 8\nv_add_u32 v{vP+1}, s3, v{vTID}\nv_lshlrev_b32 v{vP+1}, 6, v{vP+1}")
        for e in range(4): A(f"v_mov_b32 v{OUT+e}, 0")
        A("s_mov_b32 s10, 2359296\ns_mov_b32 s11, 0x20000\ns_mov_b32 s14, 98304\ns_mov_b32 s15, 0x20000")
        A.wait(lg=0)
        A(f"buffer_store_dwordx4 {v(OUT,4)}, v{vP+1}, {WS}, 0 offen sc1")
        self.job1_decode()
        A(f"s_mov_b32 s14, {WS_END}")
        def xloads():
            for ks in range(18): A(f"buffer_load_dwordx4 {v(S0+4*ks,4)}, v{vP}, s[8:11], 0 offen offset:{64*ks}")
        if self.xfirst: xloads()
        self.job_dma(LK)
        if not self.xfirst: xloads()
        self.stamp("issued")
        srd(A, 16, 52, 2359296)
        A("s_mov_b32 s4, s50\ns_mov_b32 s5, s51\ns_mov_b32 s6, s54\ns_mov_b32 s7, s55")
        A(f"s_mul_i32 s{sE}, s{sF}, {PKE_F}\ns_add_u32 s{sE}, s{sE}, {PKE}\ns_mul_i32 s3, s{sW}, 18432\ns_add_u32 s{sEW}, s{sE}, s3")
        self.build_stream()
        A(f"s_mul_i32 s58, s{sM}, 57\ns_lshr_b32 s58, s58, 9\ns_mul_i32 s58, s58, 9\ns_sub_u32 s58, s{sM}, s58")
        A(f"s_mul_i32 s59, s{sF}, {PK3_F}\ns_add_u32 s59, s59, s3\ns_add_u32 s59, s59, {PK3}")
        for p in range(9):
            A(f"s_mul_i32 {s(sB3+p)}, s58, 73728\ns_add_u32 {s(sB3+p)}, {s(sB3+p)}, s59\ns_lshl_b32 {s(sK4+p)}, s58, 11\ns_add_u32 s58, s58, 1\ns_cmp_eq_u32 s58, 9\ns_cselect_b32 s58, 0, s58")
        A(f"s_add_u32 s{sOWN}, s{sF}, s{sM}\ns_and_b32 s{sOWN}, s{sOWN}, 7")
        A(f"s_mul_i32 s{sP4}, s{sF}, {PK4_F}\ns_mul_i32 s3, s{sW}, 21504\ns_add_u32 s{sP4}, s{sP4}, s3\ns_add_u32 s{sP4}, s{sP4}, {PK4}")
        A(f"s_mul_i32 s{sCL}, s{sM}, 73728")
        A(f"s_mul_i32 s{sPT}, s{sM}, {9*65536}\ns_add_u32 s{sPT}, s{sPT}, {PART}")
        A(f"s_lshl_b32 s3, s{sM}, 3\ns_add_u32 s3, s3, s{sF}\ns_lshl_b32 s{sKV}, s3, 13\ns_add_u32 s{sKV}, s{sKV}, {KVH}")
        A(f"s_lshl_b32 s3, s3, 6\nv_mov_b32 v{t0}, s3\nv_mov_b32 v{t1}, {OOB}\nv_cmp_eq_u32 vcc, 0, v{vTID}\nv_cndmask_b32 v{vFLO}, v{t1}, v{t0}, vcc")
        A(f"s_lshl_b32 s3, s2, 2\nv_mov_b32 v{t0}, s3\nv_cndmask_b32 v{vH}, v{t1}, v{t0}, vcc")
        A(f"s_lshl_b32 s3, s{sW}, 8\nv_lshlrev_b32 v{t0}, 4, v{vI}\nv_add_u32 v{t0}, s3, v{t0}")
        A(f"v_lshl_add_u32 v{vA}, v{vQ}, 10, v{t0}")
        A(f"v_lshrrev_b32 v{t1}, 1, v{vQ}\nv_and_b32 v{t2}, 1, v{vQ}\ns_lshl_b32 s3, s{sW}, 11\nv_lshl_add_u32 v{t1}, v{t1}, 10, s3")
        A(f"v_lshl_add_u32 v{t3}, v{t2}, 3, v{t0}\nv_add_u32 v{vD}, v{t1}, v{t3}")
        A(f"s_mul_i32 s{sF9}, s{sF}, 9216\ns_add_u32 s3, s{sF9}, 8192\nv_add_u32 v{vGS}, s3, v{t3}")
        A(f"v_lshlrev_b32 v{t2}, 8, v{t2}\nv_xor_b32 v{t2}, v{t2}, v{t0}\nv_add3_u32 v{vG}, v{t1}, v{t2}, s{sF9}\nv_xor_b32 v{vG+1}, 512, v{vG}")
        for u in range(1, 4): A(f"v_xor_b32 v{vA+u}, {u*256}, v{vA}\nv_xor_b32 v{vD+u}, {u*256}, v{vD}")
        for u in range(4): A(f"v_add_u32 v{vA2+u}, 36864, v{vA+u}")
        A(f"v_mov_b32 v{ONE}, 1\nv_add_u32 v{vSHR}, {LSH0}, v{vL16}")
        self.job_pack(LK, RING, True)
        self.stamp("packed")
        srd(A, 20, 6, 72)
        def signal():
            A.wait_id(self.last_store); A("s_barrier")
            A(f"buffer_store_dword v{ONE}, v{vH}, s[20:23], 0 offen sc1")
            self.stamp("signal")
        def poll0():
            A(f"v_min_u32 v{vP}, 17, v0\nv_lshlrev_b32 v{vP}, 2, v{vP}")
            self.poll_issue(vP, vP+1, 0, "s[20:23]")
        self.layernorm(True, {self.sigpos: signal}, {12: poll0})
        self.stamp("ln1")
        self.poll_check(vP, vP+1, 0, "s[20:23]")
        self.stamp("e0")
        self.prefetch(sE, 0, E_M + 73728)
        self.flag_store(FA)
        A(f"v_and_b32 v{t0}, 0xffffff7f, v{vL16}")
        idsh = self.dma_shared(E_T0, LSH0, t0)
        self.allowed = 18; self.fill_ring()
        self.barrier()
        for u in range(4):
            A(f"v_bfe_u32 v{t0}, v{vA+u}, 2, 8\nv_add_u32 v{t0}, {LR2}, v{t0}\nds_read_b32 v{R2+u}, v{t0}")
            A(f"v_add_u32 v{t0}, s{sF9}, v{vD+u}\nds_read_b64 {R('a',XN+2*u,2)}, v{t0}")
        A(f"ds_read_b64 {R('a',XN+8,2)}, v{vGS}")
        for ks in range(18): self.bread("A3", 18, ks)
        self.allflag_addr(); self.poll_issue(vP, vP+1, FA)
        A.wait_id(idsh); self.barrier()
        self.stamp("hstart")
        self.panel(shared=LSH0)
        self.poll_check(vP, vP+1, FA); self.barrier()
        self.stamp("hdone")
        self.prefetch(sE, E_M + 73728, PKE_F - E_M - 73728)
        self.allowed = 90 + 162; self.fill_ring(self.pre_h)
        self.epi_h()
        self.stamp("hpub")
        st = {}
        hs = self.last_store
        st["t1"] = self.dma_shared(E_T1, LSH1, vL16); st["t2"] = self.dma_shared(E_T2, LSH0, vL16)
        def pub_h():
            A.wait_id(hs); self.barrier(); self.flag_store(F1)
        def tready():
            A.wait_id(st["t2"]); self.barrier()
        def poll1_issue():
            A(f"s_and_b32 s3, s{sW}, 1\ns_lshl_b32 s3, s3, 1\ns_add_u32 s3, s3, s{sM}\ns_sub_u32 s3, s3, 1\ns_cmp_lt_u32 s3, 32\ns_cselect_b32 s3, s3, s{sM}")
            A(f"v_mov_b32 v{vP}, s{sM}\nv_mov_b32 v{vP+1}, s3\nv_and_b32 v{vP+2}, 2, v0\nv_cmp_eq_u32 vcc, 0, v{vP+2}\nv_cndmask_b32 v{vP}, v{vP+1}, v{vP}, vcc")
            A(f"v_and_b32 v{vP+1}, 1, v0\nv_lshl_add_u32 v{vP}, v{vP}, 3, v{vP+1}\ns_lshl_b32 s3, s{sW}, 1\nv_add_lshl_u32 v{vP}, v{vP}, s3, 6")
            self.poll_issue(vP, vP+1, F1)
        def gather_check():
            self.poll_check(vP, vP+1, F1)
            self.stamp("f1ok")
            A(f"s_lshr_b32 s3, s{sW}, 1\ns_add_u32 s3, s3, 1\ns_sub_u32 s58, 0, s3\ns_bitcmp1_b32 s{sW}, 0\ns_cselect_b32 s3, s3, s58\ns_lshl_b32 s58, s{sM}, 6\ns_add_u32 s3, s3, s58")
            A(f"v_add_u32 v{vP}, s3, v0\nv_cmp_gt_u32 vcc, 2048, v{vP}\nv_lshrrev_b32 v{vP+1}, 6, v{vP}\nv_mul_u32_u24 v{vP+1}, 73728, v{vP+1}\nv_and_b32 v{vP}, 63, v{vP}\nv_lshl_add_u32 v{vP}, v{vP}, 4, v{vP+1}")
            A(f"v_mov_b32 v{vP+1}, {OOB}\nv_cndmask_b32 v{vP}, v{vP+1}, v{vP}, vcc\ns_mul_i32 s60, s{sW}, 18432")
        def gather_dma(j0):
            def f():
                A(f"s_add_u32 m0, s60, {j0*1024}\ns_add_u32 s57, s60, {H1 + j0*1024}")
                for j in range(3): st["g"] = A(f"buffer_load_dwordx4 v{vP}, {WS}, s57 offen offset:{j*1024} sc1 lds")
            return f
        def halo_pub():
            h0, h1 = vH, vH+1
            A(f"v_lshrrev_b32 v{t2}, 4, v{vTID}\nv_mul_u32_u24 v{t2}, 1280, v{t2}\nv_lshl_add_u32 v{t2}, v{vI}, 4, v{t2}\nv_add_u32 v{h0}, {LV}, v{t2}")
            A(f"v_subrev_u32 v{t3}, 32, v{vTID}\nv_lshrrev_b32 v{t2}, 3, v{t3}\nv_mul_u32_u24 v{t2}, 640, v{t2}\nv_and_b32 v{t3}, 7, v{t3}\nv_lshl_add_u32 v{t2}, v{t3}, 4, v{t2}\nv_add_u32 v{t2}, {LK}, v{t2}")
            A(f"v_add_u32 v{t3}, {16*1280}, v{h0}\nv_cmp_gt_u32 vcc, 32, v{vTID}\nv_cndmask_b32 v{h1}, v{t2}, v{t3}, vcc")
            A(f"v_mov_b32 v{t3}, 512\nv_mov_b32 v{t2}, 1024\nv_cndmask_b32 v{t3}, v{t3}, v{t2}, vcc")
            A(f"v_mov_b32 v{t2}, {LR2}\nv_cmp_gt_u32 vcc, 176, v{vTID}\nv_cndmask_b32 v{h1}, v{t2}, v{h1}, vcc\nv_cndmask_b32 v{t3}, 0, v{t3}, vcc\nv_add_u32 v{t3}, v{t3}, v{h1}")
            self.barrier()
            A(f"ds_read_b128 {v(OUT,4)}, v{h0} offset:1024\nds_read_b128 {v(OUT+4,4)}, v{t3}\nv_lshlrev_b32 v{vH+2}, 4, v{vTID}")
        def halo_pub2():
            A(f"s_add_u32 s57, s{sKV}, 4096")
            A(f"buffer_store_dwordx4 {v(OUT,4)}, v{vH+2}, {WS}, s{sKV} offen sc1")
            st["hs"] = A(f"buffer_store_dwordx4 {v(OUT+4,4)}, v{vH+2}, {WS}, s57 offen sc1")
            A(f"s_min_u32 s3, s{sW}, 2\ns_lshl_b32 s3, s3, 10\ns_add_u32 s3, s3, {LO + 9*1024}\nv_add_u32 v{t0}, s3, v{vL16}")
            A(f"v_mov_b32 v{t2}, 0\nv_mov_b32 v{t3}, 0\nds_write_b64 v{t0}, {v(t2,2)}\nds_write_b64 v{t0}, {v(t2,2)} offset:8")
        H = {1: {}, 2: {}, 3: {}}
        def hook(pos, f): H[pos[0]].setdefault(pos[1], []).append(f)
        hook((1, self.h_pub), pub_h); hook((1, 16), tready)
        hook(self.f1_issue, poll1_issue); hook(self.f1_check, gather_check)
        pc, kc = self.f1_check
        for j in range(6):
            kk = pc * 18 + kc + j; hook((kk // 18, kk % 18), gather_dma(3 * j))
        hook((3, 7), halo_pub); hook((3, 9), halo_pub2)
        self.panel(hooks=H[1])
        self.panel(shared=LSH1, fill=self.epi_kq(LK, 640, 16), hooks=H[2])
        self.panel(shared=LSH0, fill=self.epi_v(), hooks=H[3], sacc=XB+4)
        for sl in self.epi_kq(LQ, 512, 0) + self.epi_q_shared():
            for x in sl: A(x)
        self.stamp("qdone")
        A.wait_id(st["g"]); A.wait_id(st["hs"]); self.barrier()
        self.flag_store(F2)
        self.stamp("xstart")
        def poll2_issue():
            A(f"s_sub_u32 s3, s{sM}, 1\ns_max_i32 s3, s3, 0\ns_lshl_b32 s3, s3, 3\ns_add_u32 s3, s3, s{sF}\ns_lshl_b32 s3, s3, 6\nv_mov_b32 v{vP}, s3")
            self.poll_issue(vP, vP+1, F2)
        self.panel(jit="A4", shared=LSH0, hooks={12: [poll2_issue]}, fill=self.pre_x())
        self.barrier()
        self.stamp("xdone")
        self.epi_x()
        self.poll_check(vP, vP+1, F2)
        A(f"s_cmp_eq_u32 s{sM}, 0\ns_cselect_b32 s3, {OOB}, 0\nv_add_u32 v{vH+2}, s3, v{vH+2}\ns_sub_u32 s{sKV}, s{sKV}, 65536\ns_add_u32 s57, s{sKV}, 4096")
        A(f"buffer_load_dwordx4 {v(S0,4)}, v{vH+2}, {WS}, s{sKV} offen sc1\nbuffer_load_dwordx4 {v(S0+4,4)}, v{vH+2}, {WS}, s57 offen sc1")
        self.job2_decode(); self.job_dma(LA)
        A(f"s_mul_i32 s58, s{sF}, {PK3_F}"); self.prefetch(58, PK3, PK3_F)
        A(f"ds_write_b128 v{vH}, {v(S0,4)}\nds_write_b128 v{vH+1}, {v(S0+4,4)}")
        self.barrier(); self.flag_store(F3)
        self.stamp("xpub")
        def poll3_issue():
            A(f"v_and_b32 v{vH}, 7, v0\ns_lshl_b32 s3, s{sM}, 3\nv_add_lshl_u32 v{vH}, v{vH}, s3, 6")
            self.poll_issue(vH, vH+1, F3)
        self.attention(poll3_issue)
        self.stamp("attn")
        self.poll_check(vH, vH+1, F3)
        self.stamp("f3ok")
        for ks in range(18):
            A(f"s_add_u32 s57, s{sCL}, {X1 + ks*4096}\nbuffer_load_dwordx4 {v(S0+4*ks,4)}, v{vA}, {WS}, s57 offen sc1")
        self.job_pack(LA, ACC, False)
        self.layernorm(False, {17: lambda: A("s_barrier")}, {})
        A.wait_id(self.last_store); self.barrier(); self.flag_store(FB)
        self.stamp("g3start")
        fill = None
        def fb_issue(): self.allflag_addr(); self.poll_issue(vP, vP+1, FB)
        def fb_check():
            self.poll_check(vP, vP+1, FB); A("s_barrier")
            A(f"s_mul_i32 s58, s{sF}, {PK4_F}"); self.prefetch(58, PK4, PK4_F)
            A(f"v_mov_b32 v{vH}, {OOB}\nv_cmp_gt_u32 vcc, 16, v0\nv_cndmask_b32 v{vH}, v{vH}, v{vL16}, vcc")
            self.allowed = len(self.S)
        for p in range(9):
            hk = {}
            if p == 1: hk[1] = [lambda: A("s_barrier")]
            if p == 3: hk[1] = [fb_issue]
            if p == 4: hk[1] = [fb_check]
            self.panel(jit="A3" if p == 0 else None, fill=fill, hooks=hk)
            fill = self.epi_g3(p)
        for sl in fill:
            for x in sl: A(x)
        self.barrier()
        self.stamp("g4start")
        A(f"s_lshl_b32 s3, s{sM}, 3\ns_add_u32 s3, s3, s{sF}\ns_lshl_b32 s3, s3, 4\ns_add_u32 s3, s3, s{sW}\ns_lshl_b32 s3, s3, 2\nv_mov_b32 v{t0}, s3\nv_mov_b32 v{t1}, {OOB}\nv_cmp_eq_u32 vcc, 0, v0\nv_cndmask_b32 v{vFLO}, v{t1}, v{t0}, vcc")
        fill = None; sid = {}
        def pub(p, val):
            def f():
                A.wait_id(sid[p]); A(f"v_mov_b32 v{ONE}, {val}"); self.flag_store(F4)
            return f
        for p in range(9):
            hk = {}
            if p == self.p1 + 2: hk[3] = [pub(self.p1, 1)]
            if p == 7: hk.setdefault(14, []).append(self.final_poll_issue)
            if p == 8:
                hk.setdefault(3, []).append(lambda: sid.__setitem__(7, self.last_store))
                hk[15] = [pub(7, 2)]
                for k, f in self.final_early().items(): hk.setdefault(k, []).append(f)
            self.panel(jit="H4" if p == 0 else None, fill=fill, hooks=hk, nk=21)
            if p: sid[p - 1] = self.last_store
            if p < 8: fill = self.epi_g4(p)
        self.stamp("g4done")
        self.final()
        self.stamp("final")
        if self.stamps is not None:
            A.wait(vm=0, lg=0)
            n = len(self.names); A(f"s_memrealtime {s(70 + 2*n, 2)}"); self.names.append("end")
            A(f"s_lshl_b32 s3, s2, 2\ns_add_u32 s3, s3, s{sW}\ns_lshl_b32 s3, s3, 7\ns_add_u32 s3, s3, {STAMP}\nv_mov_b32 v1, 0")
            for i in range(n + 1):
                A(f"v_mov_b32 v2, {s(70+2*i)}\nbuffer_store_dword v2, v1, {WS}, s3 offen offset:{4*i}")
        A("s_endpgm")
        return kstart(name) + A.text() + "\n"

    def build_stream(self):
        S = []
        for mat in (MH, MK, MV, MQ, MX):
            for ks in range(18): S.append((f"s_add_u32 s56, s{sEW}, {E_M + mat*73728 + ks*1024}" if ks % 4 == 0 else None, (ks % 4) * 1024, vL16))
        for p in range(9):
            for ks in range(18): S.append((f"s_add_u32 s56, {s(sB3+p)}, {ks*1024}" if ks % 4 == 0 else None, (ks % 4) * 1024, vL16))
        for p in range(9):
            for ks in range(21):
                if ks == 0:
                    if p == 0: pre = f"s_add_u32 s56, s{sP4}, {8*86016}\ns_add_u32 s{sPB}, s56, 3072"
                    else: pre = f"s_add_u32 s56, s{sOWN}, {p}\ns_and_b32 s56, s56, 7\ns_mul_i32 s56, s56, 86016\ns_add_u32 s56, s56, s{sP4}\ns_add_u32 s{sPB}, s56, 3072"
                    S.append((pre, 0, vL16))
                elif ks < 3: S.append((None, ks * 1024, vL16 if ks == 1 else vH))
                elif (ks - 3) % 2 == 0: S.append((f"s_add_u32 s56, s{sPB}, {s(sK4 + (ks-3)//2)}", 0, vL16))
                else: S.append((None, 1024, vL16))
        self.S = S; self.cur = 0; self.free = 0; self.npanel = 0; self.nl = 0; self.allowed = 0; self.lid = {}
    def wreg(self, i): return RING + 4 * (i % self.NR)
    def fill_ring(self, maxn=999):
        n = 0
        while n < maxn and self.nl < min(self.allowed, len(self.S), self.free + self.NR):
            pre, off, va = self.S[self.nl]
            if pre: self.A(pre)
            self.lid[self.nl] = self.A(f"buffer_load_dwordx4 {v(self.wreg(self.nl),4)}, v{va}, {WS}, s56 offen offset:{off}")
            self.nl += 1; n += 1
    def dma_shared(self, src, dst, va):
        A = self.A
        A(f"s_mul_i32 s59, s{sW}, 5\ns_min_u32 s59, s59, 13\ns_lshl_b32 s59, s59, 10\ns_add_u32 m0, s59, {dst}\ns_add_u32 s59, s59, s{sE}\ns_add_u32 s59, s59, {src}")
        for j in range(4): A(f"buffer_load_dwordx4 v{va}, {WS}, s59 offen offset:{j*1024} lds")
        A("s_add_u32 m0, m0, 4096\ns_add_u32 s59, s59, 4096")
        return A(f"buffer_load_dwordx4 v{va}, {WS}, s59 offen lds")

    def breg(self, nk, ks, u):
        if nk == 21:
            if ks < 3:
                j = ks * 4 + u
                return R("a", 216 + 4 * j, 4) if j < 10 else v(XB + 4 * (j - 10), 4)
            ks -= 3
        return v(S0 + 4 * ks, 4) if u == 0 else R("a", (ks * 3 + u - 1) * 4, 4)
    def bread(self, jit, nk, ks):
        A = self.A
        for u in range(0 if jit[1] == "4" else 1, 4):
            if nk == 21 and ks < 3: base, off = vA2 + u, LO - 36864 + ks * 4096
            else:
                off = (ks - (3 if nk == 21 else 0)) * 4096; base = vA + u
                if off >= 36864: off -= 36864; base = vA2 + u
            A(f"ds_read_b128 {self.breg(nk, ks, u)}, v{base} offset:{off}")
    def panel(self, jit=None, shared=None, fill=None, hooks={}, nk=18, sacc=SACC):
        A = self.A; acc = ACC + 16 * (self.npanel % 2); self.npanel += 1; self.acc = acc
        fill = list(fill) if fill else []
        G = 1 if (jit or shared is not None) else self.G
        LAH = 2; skip = 3
        def pre(ks):
            if ks >= nk: return
            if jit: self.bread(jit, nk, ks)
            if shared is not None: A(f"ds_read_b128 {R('a', SHF + 4*(ks % 3), 4)}, v{vSHR} offset:{shared - LSH0 + ks*1024}")
        for k in range(LAH): pre(k)
        for k0 in range(0, nk, G):
            i0 = self.cur; self.cur += G; n = 0
            assert self.nl >= self.cur, "weight fragment not loaded yet"
            A.wait_id(self.lid[i0 + G - 1])
            for u in range(4):
                for j in range(G):
                    ks = k0 + j; d = v(acc + 4*u, 4)
                    A(f"v_mfma_f32_16x16x32_bf16 {d}, {v(self.wreg(i0 + j),4)}, {self.breg(nk, ks, u)}, {d if ks else 0}")
                    if n == 0: self.free = i0
                    if n % 4 == 0 or (n % 4 == 2 and self.nl < self.free + self.NR - G): self.fill_ring(1)
                    if n % 4 == 1: pre(k0 + n // 4 + LAH)
                    if n % 4 == 2:
                        for f in hooks.get(k0 + n // 4, []): f()
                    n += 1
                    if skip: skip -= 1
                    elif fill:
                        for x in fill.pop(0): self.emit(x)
            if shared is not None:
                d = v(sacc, 4)
                A(f"v_mfma_f32_16x16x32_bf16 {d}, {R('a', SHF + 4*(k0 % 3), 4)}, {self.breg(nk, k0, 0)}, {d if k0 else 0}")
        self.free = self.cur
        for sl in fill:
            for x in sl: self.emit(x)
    def emit(self, x):
        r = self.A(x)
        if "buffer_store" in x: self.last_store = r

    def layernorm(self, first, hk1, hk2):
        A = self.A; a = XB; b = OUT
        A("s_mov_b32 s58, 0x3f803f80")
        for j in range(72):
            k = j % 2
            A(f"v_dot2_f32_bf16 v{a+k}, v{S0+j}, s58, {'v%d' % (a+k) if j > 1 else 0}")
            A(f"v_dot2_f32_bf16 v{a+2+k}, v{S0+j}, v{S0+j}, {'v%d' % (a+2+k) if j > 1 else 0}")
            if j % 4 == 3 and j // 4 in hk1: hk1[j // 4]()
        A(f"v_add_f32 v{a}, v{a}, v{a+1}\nv_add_f32 v{a+2}, v{a+2}, v{a+3}")
        for op in ("v_permlane32_swap_b32", "v_permlane16_swap_b32"):
            A(f"v_mov_b32 v{a+1}, v{a}\nv_mov_b32 v{a+3}, v{a+2}\n{op} v{a}, v{a+1}\n{op} v{a+2}, v{a+3}")
            A(f"v_add_f32 v{a}, v{a}, v{a+1}\nv_add_f32 v{a+2}, v{a+2}, v{a+3}")
        A(f"v_mul_f32 v{a}, {fl(1/576)}, v{a}\nv_mul_f32 v{a+2}, {fl(1/576)}, v{a+2}")
        A(f"v_fma_f32 v{a+2}, -v{a}, v{a}, v{a+2}\nv_max_f32 v{a+2}, 0, v{a+2}\nv_add_f32 v{a+3}, {fl(EPS)}, v{a+2}\nv_rsq_f32 v{a+4}, v{a+3}")
        if first:
            A(f"v_mul_f32 v{a+6}, v{a+4}, v{a+4}\nv_fmaak_f32 v{a+6}, v{a+6}, v{a+2}, {fl(EPS)}\nv_rsq_f32 v{a+6}, v{a+6}")
            A(f"v_bfe_u32 v{a+7}, v{vA}, 2, 8\nv_add_u32 v{a+7}, {LR2}, v{a+7}\nv_mul_f32 v{a+6}, {fl(-AS)}, v{a+6}\nds_write_b32 v{a+7}, v{a+6}")
        else: A(f"v_mul_f32 v{a+4}, {fl(-AS)}, v{a+4}")
        A(f"v_mul_f32 v{a+5}, v{a}, v{a+4}\nv_sub_f32 v{a+5}, 0, v{a+5}")
        for ks in range(18):
            for e in range(4):
                r = S0 + 4*ks + e; t = b + 2*e
                A(f"v_lshlrev_b32 v{t}, 16, v{r}\nv_and_b32 v{t+1}, 0xffff0000, v{r}")
            for e in range(4):
                t = b + 2*e
                A(f"v_pk_fma_f32 {v(t,2)}, {v(t,2)}, {v(a+4,2)}, {v(a+4,2)} op_sel:[0,0,1] op_sel_hi:[1,0,1]")
            for e in range(4):
                r = S0 + 4*ks + e; t = b + 2*e
                A(f"v_cvt_pk_bf16_f32 v{r}, v{t}, v{t+1}")
            off = ks * 4096
            A(f"ds_write_b128 v{vA if off < 36864 else vA2}, {v(S0+4*ks,4)} offset:{off if off < 36864 else off - 36864}")
            if ks in hk2: hk2[ks]()

    def gelu_pk(self, src, scale, dst):
        A = self.A; t = TMP; sp = scale & ~1; hi = scale & 1
        for e in (0, 2): A(f"v_pk_mul_f32 {v(src+e,2)}, {v(src+e,2)}, {v(sp,2)} op_sel:[0,{hi}] op_sel_hi:[1,{hi}]")
        for e in (0, 2): A(f"v_pk_fma_f32 {v(t+e,2)}, {v(src+e,2)}, {v(src+e,2)}, s[60:61]")
        for e in (0, 2): A(f"v_pk_mul_f32 {v(t+e,2)}, {v(t+e,2)}, {v(src+e,2)}")
        for e in range(4): A(f"v_exp_f32 v{t+e}, v{t+e}")
        for e in (0, 2): A(f"v_pk_add_f32 {v(t+e,2)}, {v(t+e,2)}, s[62:63]")
        for e in range(4): A(f"v_rcp_f32 v{t+e}, v{t+e}")
        for e in (0, 2): A(f"v_pk_mul_f32 {v(t+e,2)}, {v(t+e,2)}, {v(src+e,2)}")
        for e in (0, 2): A(f"v_cvt_pk_bf16_f32 v{dst+e//2}, v{t+e}, v{t+e+1}")
    def pub_pair(self, tp, base):
        A = self.A; o = OUT + 4*tp
        A(f"v_permlane16_swap_b32 v{o}, v{o+2}\nv_permlane16_swap_b32 v{o+1}, v{o+3}")
        self.emit(f"buffer_store_dwordx4 {v(o,4)}, v{vG+tp}, {WS}, s{base} offen sc1")
    def pub_shared(self, r, base, off):
        A = self.A
        A(f"s_mov_b32 {off}, 0")
        self.emit(f"buffer_store_dwordx2 {v(r,2)}, v{vGS}, {WS}, s{base} offen sc1")
        A(f"s_mov_b32 {off}, -1")
    def epi_h(self):
        A = self.A; acc = self.acc
        A(f"s_mov_b32 s60, {fl(KG)}\ns_mov_b32 s61, s60\ns_mov_b32 s62, 1.0\ns_mov_b32 s63, 1.0\ns_add_u32 s59, s{sCL}, {H1}")
        for tp in range(2):
            for e in range(2): self.gelu_pk(acc + 8*tp + 4*e, R2 + 2*tp + e, OUT + 4*tp + 2*e)
            self.pub_pair(tp, 59)
        self.gelu_pk(SACC, R2, TMP + 4)
        self.pub_shared(TMP + 4, 59, "exec_hi")
    def epi_kq(self, base, stride, tok0):
        acc = self.acc; t = TMP
        L = [[f"s_lshl_b32 s3, s{sW}, 2\nv_add_u32 v{t}, s3, v{vQ}", f"v_mul_u32_u24 v{t}, {stride}, v{t}"], [f"v_add_u32 v{t}, {base + tok0*8}, v{t}"]]
        for u in range(4):
            L.append([f"v_bfe_u32 v{t+1}, v{vA+u}, 1, 9", f"v_add_u32 v{t+1}, v{t}, v{t+1}"])
            L.append([f"v_cvt_pk_bf16_f32 v{OUT+2*u}, v{acc+4*u}, v{acc+4*u+1}", f"v_cvt_pk_bf16_f32 v{OUT+2*u+1}, v{acc+4*u+2}, v{acc+4*u+3}"])
            L.append([f"ds_write_b64 v{t+1}, {v(OUT+2*u,2)}"])
        return L
    def epi_v(self):
        acc = self.acc; t = TMP
        L = [[f"s_mul_i32 s3, s{sW}, 5120\ns_add_u32 s3, s3, {LV+256}\nv_lshl_add_u32 v{t}, v{vQ}, 8, s3"]]
        for u in range(4):
            L.append([f"v_add_u32 v{t+1}, v{t}, v{vA+u}", f"ds_write_b128 v{t+1}, {v(acc+4*u,4)}"])
        L.append([f"v_cvt_pk_bf16_f32 v{OUT}, v{SACC}, v{SACC+1}", f"v_cvt_pk_bf16_f32 v{OUT+1}, v{SACC+2}, v{SACC+3}"])
        L.append([f"v_lshl_add_u32 v{t}, v{vQ}, 8, v{vA}", f"v_lshrrev_b32 v{t+1}, 1, v{t}"])
        L.append([f"v_add_u32 v{t+1}, {LK + 128 + 16*640}, v{t+1}", f"v_add_u32 v{t}, {LV + 256 + 14*1280}, v{t}"])
        L.append([f"s_mov_b32 exec_hi, 0\nds_write_b64 v{t+1}, {v(OUT,2)}\ns_mov_b32 exec_hi, -1"])
        L.append([f"s_mov_b32 exec_lo, 0\nds_write_b128 v{t}, {v(SACC,4)}\ns_mov_b32 exec_lo, -1"])
        return L
    def epi_q_shared(self):
        t = TMP; sa = XB + 4
        return [[f"v_cvt_pk_bf16_f32 v{t+2}, v{sa}, v{sa+1}", f"v_cvt_pk_bf16_f32 v{t+3}, v{sa+2}, v{sa+3}"],
                [f"v_lshrrev_b32 v{t+1}, 1, v{vA}", f"v_add_u32 v{t+1}, {LQ + 16*512}, v{t+1}"],
                [f"s_mov_b32 exec_hi, 0\nds_write_b64 v{t+1}, {v(t+2,2)}\ns_mov_b32 exec_hi, -1"]]
    def epi_x(self):
        A = self.A; acc = self.acc
        A(f"s_mov_b32 s60, {fl(-1/AS)}\ns_mov_b32 s61, s60\ns_add_u32 s59, s{sCL}, {X1}")
        oth = ACC + 16 - (acc - ACC)
        def four(src, xn, dst):
            for e in range(2): A(f"v_pk_fma_f32 {v(xn+2*e,2)}, {v(src+2*e,2)}, s[60:61], {v(xn+2*e,2)}")
            for e in range(2): A(f"v_cvt_pk_bf16_f32 v{dst+e}, v{xn+2*e}, v{xn+2*e+1}")
        for tp in range(2):
            for e in range(2): four(acc + 8*tp + 4*e, oth + 8*tp + 4*e, OUT + 4*tp + 2*e)
            self.pub_pair(tp, 59)
        four(SACC, XB, TMP + 4)
        self.pub_shared(TMP + 4, 59, "exec_lo")
    def pre_x(self):
        oth = self.acc; L = []
        for k in range(10):
            d = oth + 2*k if k < 8 else XB + 2*(k-8)
            L.append([f"v_accvgpr_read_b32 v{d+1}, a{XN+k}"])
            L.append([f"v_lshlrev_b32 v{d}, 16, v{d+1}", f"v_and_b32 v{d+1}, 0xffff0000, v{d+1}"])
        return L
    def epi_g3(self, p):
        acc = self.acc; n = 16
        T = lambda i: TMP + (i % 6)
        fm = lambda i: f"v_fmaak_f32 v{T(i)}, v{acc+i}, v{acc+i}, {fl(KG)}"
        m1 = lambda i: f"v_mul_f32 v{T(i)}, v{T(i)}, v{acc+i}"
        ex = lambda i: f"v_exp_f32 v{T(i)}, v{T(i)}"
        ad = lambda i: f"v_add_f32 v{T(i)}, 1.0, v{T(i)}"
        rc = lambda i: f"v_rcp_f32 v{T(i)}, v{T(i)}"
        cv = lambda i: f"v_cvt_pk_bf16_f32 v{OUT + i//2}, v{T(i)}, v{T(i+1)}"
        S = []; ok = lambda i: 0 <= i < n
        if p == 8: S.append([f"v_add_u32 v{vD+u}, 8192, v{vD+u}" for u in range(4)])
        for j in range(n + 1):
            a = [f(i) for f, i in ((fm, j), (ad, j-1)) if ok(i)]
            if a: S.append(a)
            if ok(j-1): S.append([rc(j-1)])
            b = [f(i) for f, i in ((m1, j), (m1, j-1)) if ok(i)]
            if b: S.append(b)
            if ok(j): S.append([ex(j)])
            if j % 4 == 0 and j >= 4:
                u = j // 4 - 1
                S.append([cv(j-4), cv(j-2), f"ds_write_b64 v{vD+u}, {v(OUT+2*u,2)} offset:{min(p,7)*8192}"])
        return S
    def epi_g4(self, p):
        acc = self.acc; S = []
        if p == 0: S.append([f"s_lshl_b32 s3, s{sF}, 13\ns_lshl_b32 s58, s{sW}, 11\ns_add_u32 s3, s3, s58\ns_add_u32 s{sPS}, s3, s{sPT}\ns_add_u32 s59, s{sPS}, {8*65536}"])
        else: S.append([f"s_add_u32 s59, s{sOWN}, {p}\ns_and_b32 s59, s59, 7\ns_lshl_b32 s59, s59, 16\ns_add_u32 s59, s59, s{sPS}"])
        for tp in range(2):
            for k in (0, 4): S.append([f"v_cvt_pk_bf16_f32 v{OUT+4*tp+(k+e)//2}, v{acc+8*tp+k+e}, v{acc+8*tp+k+e+1}" for e in (0, 2)])
            S.append([f"buffer_store_dwordx4 {v(OUT+4*tp,4)}, v{vL16}, {WS}, s59 offen offset:{tp*1024} sc1"])
        return S

    def attention(self, mid):
        A = self.A
        Qr = S0; Kr = [S0 + 10, S0 + 20]; Vr = [S0 + 30, S0 + 50]; Lg = ACC; O = ACC + 8; t = TMP
        ak, akh, av, avh = ACC + 26, ACC + 27, ACC + 28, ACC + 29
        A(f"s_lshr_b32 s67, s{sW}, 1\ns_mul_i32 s67, s67, 9\ns_and_b32 s58, s{sW}, 1\ns_mul_i32 s3, s58, 5\ns_add_u32 s68, s67, s3\ns_add_u32 s69, s67, 4\ns_lshl_b32 s67, s58, 2")
        A(f"v_lshlrev_b32 v{t}, 3, v0")
        A(f"s_lshl_b32 s3, s68, 9\ns_add_u32 s3, s3, {LQ}\nv_add_u32 v{t+1}, s3, v{t}")
        for c in range(4): A(f"ds_read_b64 {v(Qr+2*c,2)}, v{t+1} offset:{c*512}")
        A(f"s_lshl_b32 s3, s69, 9\ns_add_u32 s3, s3, s67\ns_add_u32 s3, s3, {LQ}\nv_add_u32 v{t+2}, s3, v{t}\nds_read_b32 v{Qr+8}, v{t+2}")
        A(f"s_mul_i32 s3, s68, 640\ns_add_u32 s59, s3, {LK+16}\nv_add_u32 v{ak}, s59, v{t}\ns_lshl_b32 s3, s3, 1\ns_add_u32 s3, s3, {LV+32}\nv_add_u32 v{av}, s3, v{vL16}")
        A(f"s_mul_i32 s3, s69, 640\ns_add_u32 s3, s3, s67\ns_add_u32 s59, s3, {LK+16}\nv_add_u32 v{akh}, s59, v{t}\ns_lshl_b32 s3, s3, 1\ns_add_u32 s3, s3, {LV+32}\nv_add_u32 v{avh}, s3, v{vL16}")
        def rk(j):
            for c in range(4): A(f"ds_read_b64 {v(Kr[j%2]+2*c,2)}, v{ak} offset:{c*640 + (14-2*j)*8}")
            A(f"ds_read_b32 v{Kr[j%2]+8}, v{akh} offset:{(14-2*j)*8}")
        def rv(j):
            for c in range(4): A(f"ds_read_b128 {v(Vr[j%2]+4*c,4)}, v{av} offset:{c*1280 + (14-2*j)*16}")
            A(f"ds_read_b64 {v(Vr[j%2]+16,2)}, v{avh} offset:{(14-2*j)*16}")
        rk(0); rk(1)
        for j in range(8):
            A.wait(lg=5)
            for d in range(9): A(f"v_dot2_f32_bf16 v{Lg+j}, v{Qr+d}, v{Kr[j%2]+d}, {'v%d' % (Lg+j) if d else 0}")
            if j + 2 < 8: rk(j + 2)
            elif j == 6: rv(0)
            else: rv(1)
        A(f"s_lshl_b32 s3, s{sM}, 6\nv_add_u32 v{t}, s3, v0\nv_mov_b32 v{t+1}, {fl(-1e9 * 18 ** 0.5)}")
        for j in range(1, 8): A(f"v_cmp_gt_u32 vcc, {2*j}, v{t}\nv_cndmask_b32 v{Lg+j}, v{Lg+j}, v{t+1}, vcc")
        A(f"v_max3_f32 v{t}, v{Lg}, v{Lg+1}, v{Lg+2}\nv_max3_f32 v{t+1}, v{Lg+3}, v{Lg+4}, v{Lg+5}\nv_max3_f32 v{t}, v{t}, v{Lg+6}, v{Lg+7}\nv_max_f32 v{t}, v{t}, v{t+1}")
        for j in range(8): A(f"v_sub_f32 v{Lg+j}, v{Lg+j}, v{t}")
        for j in range(8): A(f"v_mul_f32 v{Lg+j}, {fl(SCL)}, v{Lg+j}")
        for j in range(8): A(f"v_exp_f32 v{Lg+j}, v{Lg+j}")
        A(f"v_pk_add_f32 {v(t,2)}, {v(Lg,2)}, {v(Lg+2,2)}\nv_pk_add_f32 {v(t+2,2)}, {v(Lg+4,2)}, {v(Lg+6,2)}\nv_pk_add_f32 {v(t,2)}, {v(t,2)}, {v(t+2,2)}\nv_add_f32 v{t}, v{t}, v{t+1}")
        A(f"v_rcp_f32 v{t}, v{t}\nv_mul_f32 v{t}, {fl(-AS)}, v{t}")
        mid()
        for j in range(8):
            hi = j & 1
            A.wait(lg=5 if j < 7 else 0)
            for d in range(9):
                if j == 0: A(f"v_pk_mul_f32 {v(O+2*d,2)}, {v(Vr[0]+2*d,2)}, {v(Lg,2)} op_sel_hi:[1,0]")
                else: A(f"v_pk_fma_f32 {v(O+2*d,2)}, {v(Vr[j%2]+2*d,2)}, {v(Lg+j-hi,2)}, {v(O+2*d,2)} op_sel:[0,{hi},0] op_sel_hi:[1,{hi},1]")
            if j + 2 < 8: rv(j + 2)
        for d in range(9): A(f"v_pk_mul_f32 {v(O+2*d,2)}, {v(O+2*d,2)}, {v(t,2)} op_sel_hi:[1,0]")
        for d in range(9): A(f"v_cvt_pk_bf16_f32 v{OUT+d if d < 8 else t+2}, v{O+2*d}, v{O+2*d+1}")
        for c in range(5):
            if c < 4: A(f"s_add_u32 s3, s68, {c}")
            else: A("s_mov_b32 s3, s69")
            A(f"s_lshr_b32 s59, s3, 1\ns_lshl_b32 s59, s59, 10\ns_and_b32 s3, s3, 1\ns_lshl_b32 s3, s3, 3\ns_add_u32 s3, s3, s59\ns_add_u32 s3, s3, {LO}")
            if c == 4: A("s_add_u32 s3, s3, s67")
            A(f"v_add_u32 v{t+1}, s3, v{vL16}")
            A(f"ds_write_b64 v{t+1}, {v(OUT+2*c,2)}" if c < 4 else f"ds_write_b32 v{t+1}, v{t+2}")

    def final_poll_issue(self):
        A = self.A
        A(f"s_lshr_b32 s64, s{sF}, 1\nv_mov_b32 v{vP}, s64\nv_mov_b32 v{vP+1}, s{sW}\nv_cmp_gt_u32 vcc, 8, v0\nv_cndmask_b32 v{vP}, v{vP}, v{vP+1}, vcc")
        A(f"v_and_b32 v{vP+1}, 7, v0\ns_lshl_b32 s3, s{sM}, 3\nv_add_lshl_u32 v{vP+1}, v{vP+1}, s3, 4\nv_add_lshl_u32 v{vP}, v{vP}, v{vP+1}, 2")
        self.poll_issue(vP, vP+1, F4)
    def slot(self):
        r = self.wreg(self.nslot); assert self.nslot < self.free + self.NR, "ring slot busy"; self.nslot += 1; return r
    def part_load(self, p):
        A = self.A; self.P[p] = (self.slot(), self.slot())
        A(f"s_sub_u32 s3, s{sF}, {p}\ns_and_b32 s3, s3, 7\ns_lshl_b32 s3, s3, 13\ns_add_u32 s57, s3, s66")
        for tp in range(2): A(f"buffer_load_dwordx4 {v(self.P[p][tp],4)}, v{vL16}, {WS}, s57 offen offset:{tp*1024} sc1")
    def final_early(self):
        A = self.A; t = TMP; self.nslot = len(self.S); self.P = {}; hk = {}
        def first():
            self.poll_check(vP, vP+1, F4)
            A(f"s_lshl_b32 s66, s{sOWN}, 16\ns_lshl_b32 s3, s{sW}, 11\ns_add_u32 s66, s66, s3\ns_add_u32 s66, s66, s{sPT}")
            self.part_load(1)
        hk[4] = first
        for p in range(2, self.p1 + 1): hk[4 + 2 * (p - 1)] = (lambda p=p: self.part_load(p))
        k = 4 + 2 * self.p1
        def extra():
            self.E = (self.slot(), self.slot())
            A(f"v_lshlrev_b32 v{t}, 13, v{vQ}\nv_lshl_add_u32 v{t}, v{vI}, 4, v{t}\ns_lshl_b32 s3, s{sF}, 10\ns_lshl_b32 s58, s{sW}, 8\ns_add_u32 s3, s3, s58\ns_add_u32 s3, s3, s{sPT}\ns_add_u32 s57, s3, {8*65536}\ns_add_u32 s58, s57, 32768")
            A(f"buffer_load_dwordx4 {v(self.E[0],4)}, v{t}, {WS}, s57 offen sc1\nbuffer_load_dwordx4 {v(self.E[1],4)}, v{t}, {WS}, s58 offen sc1")
        hk[k] = extra
        def resid():
            oth = ACC + 16 - (self.acc - ACC); self.RX = oth; self.RX1 = oth + 8
            A(f"s_lshl_b32 s62, s{sOWN}, 7\ns_lshl_b32 s3, s{sW}, 5\ns_add_u32 s62, s62, s3\ns_add_u32 s62, s62, s{sCL}")
            A(f"s_lshl_b32 s63, s{sOWN}, 13\ns_add_u32 s63, s63, s{sCL}\ns_add_u32 s63, s63, {X1 - 8192}")
            for u in range(4):
                A(f"v_bfe_u32 v{t}, v{vA+u}, 4, 6\nv_mul_u32_u24 v{t}, 1152, v{t}\nv_lshl_add_u32 v{t}, v{vQ}, 3, v{t}")
                A(f"buffer_load_dwordx2 {v(self.RX+2*u,2)}, v{t}, s[8:11], s62 offen")
                A(f"buffer_load_dwordx2 {v(self.RX1+2*u,2)}, v{vD+u}, {WS}, s63 offen sc1")
        hk[5] = resid
        def resid2():
            ex, ex1, ea = SACC, SACC + 1, SACC + 2
            A(f"s_and_b32 s3, s{sF}, 1\ns_lshl_b32 s3, s3, 1\ns_xor_b32 s3, s3, s64\nv_lshrrev_b32 v{t}, 5, v0\nv_xor_b32 v{t}, s3, v{t}\nv_lshl_add_u32 v{t}, v{t}, 4, v{vI}")
            A(f"v_and_b32 v{t+1}, 1, v{vQ}\nv_lshlrev_b32 v{t+1}, 2, v{t+1}\nv_mul_u32_u24 v{ea}, 1152, v{t}\nv_add_u32 v{ea}, v{ea}, v{t+1}\nv_lshl_add_u32 v{t}, v{t}, 4, v{t+1}")
            A(f"s_lshl_b32 s65, s64, 5\ns_lshl_b32 s3, s{sW}, 3\ns_add_u32 s65, s65, s3\ns_add_u32 s65, s65, s{sCL}\ns_add_u32 s65, s65, 1024")
            A(f"buffer_load_dword v{ex}, v{ea}, s[8:11], s65 offen")
            A(f"s_lshl_b32 s58, s64, 1\ns_lshr_b32 s3, s{sW}, 1\ns_add_u32 s58, s58, s3\ns_lshl_b32 s58, s58, 10\ns_and_b32 s3, s{sW}, 1\ns_lshl_b32 s3, s3, 3\ns_add_u32 s58, s58, s3\ns_add_u32 s58, s58, s{sCL}\ns_add_u32 s58, s58, {X1 + 65536}")
            A(f"buffer_load_dword v{ex1}, v{t}, {WS}, s58 offen sc1")
        hk[7] = resid2
        return hk
    def final(self):
        A = self.A; acc = self.acc; t = TMP
        def unpack(dst, r): A(f"v_lshlrev_b32 v{dst}, 16, v{r}\nv_and_b32 v{dst+1}, 0xffff0000, v{r}")
        def addpart(p):
            for k in range(8):
                tt = t + 2 * (k % 2)
                unpack(tt, self.P[p][k // 4] + k % 4)
                A(f"v_pk_add_f32 {v(acc+2*k,2)}, {v(acc+2*k,2)}, {v(tt,2)}")
        A(f"s_mov_b32 s60, {fl(-1/AS)}\ns_mov_b32 s61, s60")
        RS = S0
        for k in range(8):
            unpack(RS + 2*k, self.RX + k); unpack(t, self.RX1 + k)
            A(f"v_pk_add_f32 {v(RS+2*k,2)}, {v(RS+2*k,2)}, {v(t,2)}")
        for p in range(1, 3): addpart(p)
        A(f"v_min_u32 v{vP}, {6 - self.p1}, v0\ns_add_u32 s3, s{sF}, 1\nv_add_u32 v{vP}, s3, v{vP}\nv_and_b32 v{vP}, 7, v{vP}\ns_lshl_b32 s3, s{sM}, 3\nv_add_lshl_u32 v{vP}, v{vP}, s3, 4\nv_add_lshl_u32 v{vP}, v{vP}, s{sW}, 2")
        self.poll_issue(vP, vP+1, F4)
        for p in range(3, self.p1 + 1): addpart(p)
        a = S0 + 16; ex, ex1, ea = SACC, SACC + 1, SACC + 2
        for k in range(4):
            unpack(a + 2*k, self.E[0] + k); unpack(t, self.E[1] + k)
            A(f"v_pk_add_f32 {v(a+2*k,2)}, {v(a+2*k,2)}, {v(t,2)}")
        for k in range(4): A(f"v_permlane32_swap_b32 v{a+k}, v{a+4+k}")
        for k in (0, 2): A(f"v_pk_add_f32 {v(a+k,2)}, {v(a+k,2)}, {v(a+4+k,2)}")
        for k in range(2): A(f"v_permlane16_swap_b32 v{a+k}, v{a+2+k}")
        A(f"v_pk_add_f32 {v(a,2)}, {v(a,2)}, {v(a+2,2)}")
        unpack(t, ex); unpack(t+2, ex1)
        A(f"v_pk_add_f32 {v(t,2)}, {v(t,2)}, {v(t+2,2)}\nv_pk_fma_f32 {v(t,2)}, {v(a,2)}, s[60:61], {v(t,2)}\nv_cvt_pk_bf16_f32 v{a}, v{t}, v{t+1}")
        oa = S0 + 24
        for tp in range(2):
            A(f"v_bfe_u32 v{t}, v{vA+2*tp}, 4, 6\nv_and_b32 v{t+1}, 1, v{vQ}\nv_lshlrev_b32 v{t+1}, 4, v{t+1}\nv_xor_b32 v{t}, v{t}, v{t+1}\nv_mul_u32_u24 v{t}, 1152, v{t}\nv_lshrrev_b32 v{t+1}, 1, v{vQ}\nv_lshl_add_u32 v{oa+tp}, v{t+1}, 4, v{t}")
        self.poll_check(vP, vP+1, F4, need="2")
        self.stamp("f4ok")
        for p in range(self.p1 + 1, 8): self.part_load(p)
        A(f"buffer_store_dword v{a}, v{ea}, s[16:19], s65 offen")
        for p in range(self.p1 + 1, 8): addpart(p)
        for k in range(8): A(f"v_pk_fma_f32 {v(acc+2*k,2)}, {v(acc+2*k,2)}, s[60:61], {v(RS+2*k,2)}")
        for k in range(8): A(f"v_cvt_pk_bf16_f32 v{OUT+k}, v{acc+2*k}, v{acc+2*k+1}")
        for tp in range(2):
            o = OUT + 4*tp
            A(f"v_permlane16_swap_b32 v{o}, v{o+2}\nv_permlane16_swap_b32 v{o+1}, v{o+3}")
            A(f"buffer_store_dwordx4 {v(o,4)}, v{oa+tp}, s[16:19], s62 offen")

def build_file(stamps=None, **o):
    m = Main(stamps=stamps, **o)
    txt = header([f"; @launch grid=(256,1,1) block=(256,1,1) lds={LDS_END}"])
    txt += m.gen(KN)
    txt += '.section .rodata,"a"\n' + kdesc(KN, 512, 102, 256)
    return txt, m
SA = ["start", "issued", "packed", "signal", "ln1", "e0", "hstart", "hdone", "hpub", "f1ok", "qdone", "xstart", "xdone", "xpub", "attn"]
SB = ["start", "e0", "hpub", "xstart", "xpub", "attn", "f3ok", "g3start", "g4start", "g4done", "f4ok", "final"]
if __name__ == "__main__":
    st = {"a": SA, "b": SB}.get(sys.argv[2]) if len(sys.argv) > 2 else None
    t, m = build_file(stamps=st)
    open(sys.argv[1], "w").write(t)
    print(m.A.stats, "nops", m.A.nops, m.names, "WS_END", hex(WS_END))
```

```python
import sys; sys.path.insert(0,'gen')
from asmlib import *
import k1
def touch(name, b, off, nbytes, size):
    A = Asm()
    A("s_cmp_ge_u32 s2, 256\ns_cbranch_scc0 T_go\ns_endpgm\nT_go:")
    A(f"s_load_dwordx2 s[4:5], s[0:1], {8*b}"); A.wait(lg=0)
    k1.srd(A, 8, 4, size)
    A("s_lshl_b32 s3, s2, 12\nv_lshlrev_b32 v1, 4, v0\nv_add_u32 v1, s3, v1")
    for j in range((nbytes + (1 << 20) - 1) >> 20):
        A(f"s_mov_b32 s3, {off + (j << 20)}\nbuffer_load_dwordx4 v[4:7], v1, s[8:11], s3 offen"); A.vm = []
    A.force_wait(vm=0)
    A("s_endpgm")
    return kstart(name) + A.text() + "\n"
base = k1.build_file(pf=46000)[0]
for n, a in dict(a=(3, 0, 0, 16), b=(3, 0, 2359296, 2359296), c=(10, 64 << 20, 2 << 20, 256 << 20), d=(10, 64 << 20, 16 << 20, 256 << 20), e=(10, 238 << 20, 16 << 20, 256 << 20), f=(10, 64 << 20, 48 << 20, 256 << 20)).items():
    t = "; @launch kernel=touch_kernel grid=(256,1,1) block=(256,1,1) lds=0\n" + base
    t = t.replace('.section .rodata,"a"\n', touch("touch_kernel", *a) + '.section .rodata,"a"\n' + kdesc("touch_kernel", 16, 32))
    open('t_%s.s' % n, 'w').write(t)
```
